```python
import torch

def _softmax(x, axis=-1):
    return torch.softmax(x, dim=axis)
def _gelu(x):
    return torch.nn.functional.gelu(x, approximate="tanh")
def _silu(x):
    return torch.nn.functional.silu(x)
def _sigmoid(x):
    return torch.sigmoid(x)
def _layernorm(x, axis=-1, eps=1e-5):
    m = x.mean(dim=axis, keepdim=True)
    v = x.var(dim=axis, keepdim=True, unbiased=False)
    return (x - m) / torch.sqrt(v + eps)
def _scatter_add(tgt, idx, src, axis=0):
    return tgt.clone().index_add_(axis, idx, src)
def _segment_sum(src, seg, n):
    out = torch.zeros((n,) + src.shape[1:], dtype=src.dtype)
    return out.index_add_(0, seg, src)
def _pad(x, pw):
    flat = tuple(v for pair in reversed(pw) for v in pair)
    return torch.nn.functional.pad(x, flat)

kernel_name = 'sequential_preLN__spectral_fnet__geglu_ffn__prompt'

def setup_inputs():

    _w = (lambda a: (lambda t: t.to(torch.bfloat16) if t.is_floating_point() else t)(torch.as_tensor(a)))
    def _A_setup():
        B, S, D = 1, 2048, 640
        ns = torch.arange(S)[:, None] * torch.arange(S)[None, :]
        nd = torch.arange(D)[:, None] * torch.arange(D)[None, :]
        Ws_re = torch.cos(-2.0 * torch.pi * ns / S).to(float)
        Ws_im = torch.sin(-2.0 * torch.pi * ns / S).to(float)
        Wd_re = torch.cos(-2.0 * torch.pi * nd / D).to(float)
        Wd_im = torch.sin(-2.0 * torch.pi * nd / D).to(float)
        return {
            "x": _w((lambda *s: torch.randn(*s, dtype=torch.bfloat16) * 0.05)(B, S, D)),
            "dft_seq_re": _w(Ws_re),
            "dft_seq_im": _w(Ws_im),
            "dft_hid_re": _w(Wd_re),
            "dft_hid_im": _w(Wd_im),
        }
    _A_in = _A_setup()

    def _B_setup():
        B, S, D, F = 1, 2048, 640, 1536
        return {
            "x": _w((lambda *s: torch.randn(*s, dtype=torch.bfloat16) * 0.05)(B, S, D)),
            "w_gate": _w((lambda *s: torch.randn(*s, dtype=torch.bfloat16) * 0.2)(D, F)),
            "w_up": _w((lambda *s: torch.randn(*s, dtype=torch.bfloat16) * 0.2)(D, F)),
            "w_down": _w((lambda *s: torch.randn(*s, dtype=torch.bfloat16) * 0.2)(F, D)),
        }
    _B_in = _B_setup()

    return {
        "A_x": _A_in["x"],
        "A_dft_seq_re": _A_in["dft_seq_re"],
        "A_dft_seq_im": _A_in["dft_seq_im"],
        "A_dft_hid_re": _A_in["dft_hid_re"],
        "A_dft_hid_im": _A_in["dft_hid_im"],
        "B_x": _B_in["x"],
        "B_w_gate": _B_in["w_gate"],
        "B_w_up": _B_in["w_up"],
        "B_w_down": _B_in["w_down"],
    }

def reference(A_x, A_dft_seq_re, A_dft_seq_im, A_dft_hid_re, A_dft_hid_im, B_x, B_w_gate, B_w_up, B_w_down):
    def _A_ref(x, dft_seq_re, dft_seq_im, dft_hid_re, dft_hid_im):
        a = torch.einsum("bsd,ed->bse", x, dft_hid_re)
        b = torch.einsum("bsd,ed->bse", x, dft_hid_im)
        y = torch.einsum("ts,bse->bte", dft_seq_re, a) - torch.einsum("ts,bse->bte", dft_seq_im, b)
        return y

    def _B_ref(x, w_gate, w_up, w_down):
        return (_gelu(x @ w_gate) * (x @ w_up)) @ w_down

    x = A_x
    h = x + _A_ref(_layernorm(x, axis=-1), A_dft_seq_re, A_dft_seq_im, A_dft_hid_re, A_dft_hid_im)
    h2 = h + _B_ref(_layernorm(h, axis=-1), B_w_gate, B_w_up, B_w_down)
    return h2
```

```python
ABT_OFF = 0
H_OFF = 0x500000
ACT_OFF = 0x780000
WGT_OFF = 0xD80000
WUT_OFF = WGT_OFF + 1536 * 640 * 2
WDT_OFF = WUT_OFF + 1536 * 640 * 2
WSUM_OFF = WDT_OFF + 1536 * 640 * 2
WS_USED = WSUM_OFF + 3072 * 4
```

```python
import struct, sys
import layout as L

NAME = "sequential_preLN__spectral_fnet__geglu_ffn__prompt"


def f32hex(x):
    return "0x%08x" % struct.unpack("<I", struct.pack("<f", x))[0]


class KB:
    def __init__(self, name):
        self.name = name
        self.L = []
        self.vm = []
        self.lg = []

    def e(self, s):
        self.L.append("    " + s)

    def c(self, s):
        self.L.append("    ; " + s)

    def label(self, s):
        self.L.append(s + ":")

    def vmem(self, s, tag=None):
        self.e(s)
        self.vm.append(tag)

    def lds(self, s, tag=None):
        self.e(s)
        self.lg.append(tag)

    def wait_vm(self, pred):
        idx = max([i for i, t in enumerate(self.vm) if pred(t)], default=-1)
        if idx < 0:
            return
        n = len(self.vm) - 1 - idx
        self.e(f"s_waitcnt vmcnt({min(n, 63)})")
        self.vm = self.vm[idx + 1:]

    def wait_vm_all(self):
        self.e("s_waitcnt vmcnt(0)")
        self.vm = []

    def wait_lg(self, pred):
        idx = max([i for i, t in enumerate(self.lg) if pred(t)], default=-1)
        if idx < 0:
            return
        n = len(self.lg) - 1 - idx
        self.e(f"s_waitcnt lgkmcnt({min(n, 15)})")
        self.lg = self.lg[idx + 1:]

    def wait_lg_all(self):
        self.e("s_waitcnt lgkmcnt(0)")
        self.lg = []

    def srd(self, d, lo, hi, nbytes):
        self.e(f"s_mov_b32 s{d}, s{lo}")
        self.e(f"s_and_b32 s{d+1}, s{hi}, 0xffff")
        self.e(f"s_mov_b32 s{d+2}, {nbytes}")
        self.e(f"s_mov_b32 s{d+3}, 0x00020000")

    def text(self):
        return "\n".join(self.L)


def v4(b):
    return f"v[{b}:{b+3}]"


def a4(b):
    return f"a[{b}:{b+3}]"


def v2(b):
    return f"v[{b}:{b+1}]"


P_X, P_CR, P_CI, P_WR, P_WI, P_BX, P_WG, P_WU = 16, 18, 20, 22, 24, 26, 28, 30
P_WD, P_OUT, P_DBG, P_WS = 32, 34, 36, 38
X_BYTES = 2048 * 640 * 2
C_BYTES = 2048 * 2048 * 2
WH_BYTES = 640 * 640 * 2
WF_BYTES = 640 * 1536 * 2


def prologue(k, nwg):
    k.e(f"s_cmp_ge_u32 s2, {nwg}")
    k.e(f"s_cbranch_scc1 {k.name}_end")
    k.e("s_load_dwordx16 s[16:31], s[0:1], 0")
    k.e("s_load_dwordx8 s[32:39], s[0:1], 64")
    k.e("v_and_b32 v1, 63, v0")
    k.e("v_lshrrev_b32 v4, 6, v0")
    k.e("v_and_b32 v2, 15, v1")
    k.e("v_lshrrev_b32 v3, 4, v1")
    k.e("v_readfirstlane_b32 s64, v4")


def bf16r(k, dst, src):
    k.e(f"v_cvt_pk_bf16_f32 v{dst}, v{src}, v{src}")
    k.e(f"v_lshlrev_b32 v{dst}, 16, v{dst}")


def stats(k, panel, vones, vtmp, vmean, vrinv, vx16, vx32):
    for b in range(2):
        vs, vq = vtmp + 2 * b, vtmp + 2 * b + 1
        k.e(f"v_mov_b32 v{vs}, 0")
        k.e(f"v_mov_b32 v{vq}, 0")
        for j in range(20):
            for d in range(4):
                r = panel(b, j) + d
                k.e(f"v_dot2_f32_bf16 v{vs}, v{r}, v{vones}, v{vs}")
                k.e(f"v_dot2_f32_bf16 v{vq}, v{r}, v{r}, v{vq}")
    k.e("s_nop 3")
    t = vtmp + 4
    for addr in (vx16, vx32):
        for i in range(4):
            k.lds(f"ds_bpermute_b32 v{t+i}, v{addr}, v{vtmp+i}", "st")
        k.wait_lg_all()
        for i in range(4):
            k.e(f"v_add_f32 v{vtmp+i}, v{vtmp+i}, v{t+i}")
        k.e("s_nop 1")
    inv = f32hex(1.0 / 640.0)
    for b in range(2):
        vs, vq = vtmp + 2 * b, vtmp + 2 * b + 1
        k.e(f"v_mul_f32 v{vs}, {inv}, v{vs}")
        k.e(f"v_mul_f32 v{vq}, {inv}, v{vq}")
        k.e(f"v_fma_f32 v{vq}, -v{vs}, v{vs}, v{vq}")
        k.e(f"v_max_f32 v{vq}, 0, v{vq}")
        bf16r(k, vmean[b], vs)
        bf16r(k, vq, vq)
        k.e(f"v_add_f32 v{vq}, {f32hex(1e-5)}, v{vq}")
        bf16r(k, vq, vq)
        k.e(f"v_sqrt_f32 v{vq}, v{vq}")
        k.e("s_nop 0")
        bf16r(k, vq, vq)
        k.e(f"v_rcp_f32 v{vrinv[b]}, v{vq}")
        k.e("s_nop 0")


def gen_k1():
    k = KB("k1_kernel")
    prologue(k, 256)
    S_X, S_W, S_WS, S_WG, S_WU, S_WD = 40, 44, 48, 52, 56, 60
    k.e("s_and_b32 s67, s2, 7")
    k.e("s_lshr_b32 s68, s2, 3")
    k.e("s_and_b32 s65, s67, 3")
    k.e("s_lshl_b32 s65, s65, 2")
    k.e("s_and_b32 s69, s68, 3")
    k.e("s_add_u32 s65, s65, s69")
    k.e("s_lshr_b32 s66, s67, 2")
    k.e("s_lshl_b32 s66, s66, 3")
    k.e("s_lshr_b32 s69, s68, 2")
    k.e("s_add_u32 s66, s66, s69")
    k.e("s_waitcnt lgkmcnt(0)")
    k.srd(S_X, P_X, P_X + 1, X_BYTES)
    k.e("s_cmp_lt_u32 s66, 8")
    k.e(f"s_cselect_b32 s70, s{P_WR}, s{P_WI}")
    k.e(f"s_cselect_b32 s71, s{P_WR+1}, s{P_WI+1}")
    k.srd(S_W, 70, 71, WH_BYTES)
    k.srd(S_WS, P_WS, P_WS + 1, L.WS_USED)
    k.srd(S_WG, P_WG, P_WG + 1, WF_BYTES)
    k.srd(S_WU, P_WU, P_WU + 1, WF_BYTES)
    k.srd(S_WD, P_WD, P_WD + 1, WF_BYTES)

    PANEL = 16

    def panel(b, j):
        return PANEL + (b * 20 + j) * 4

    TREG = 176
    V_P0, V_P1, V_DMA, V_B0, V_B1, V_B2, V_B3 = 200, 201, 202, 203, 204, 205, 206
    V_ONES = 208
    V_X16, V_X32 = 212, 213
    V_T = 214
    V_MEAN = [222, 223]
    V_RINV = [224, 225]
    V_TL0, V_TL1, V_TS, V_DL0, V_DL1, V_DS = 226, 227, 228, 229, 230, 231
    V_ST = 232
    V_RM = 236
    V_RR = 244

    def acc(b, blk):
        return (b * 5 + blk) * 4

    def accw(blk):
        return 40 + blk * 4

    def sf(buf, blk):
        return 60 + buf * 20 + blk * 4

    k.e("s_lshl_b32 s69, s65, 7")
    k.e("s_lshl_b32 s72, s64, 5")
    k.e("s_add_u32 s69, s69, s72")
    k.e("v_lshrrev_b32 v5, 2, v2")
    k.e("v_lshlrev_b32 v5, 3, v5")
    k.e("v_and_b32 v6, 3, v2")
    k.e("v_add_u32 v5, v5, v6")
    k.e("v_add_u32 v5, s69, v5")
    k.e("v_mul_u32_u24 v5, 1280, v5")
    k.e("v_lshlrev_b32 v6, 4, v3")
    k.e(f"v_add_u32 v{V_P0}, v5, v6")
    k.e(f"v_add_u32 v{V_P1}, {4*1280}, v{V_P0}")
    for j in range(20):
        for b in range(2):
            k.vmem(f"buffer_load_dwordx4 {v4(panel(b,j))}, v{V_P0+b}, s[{S_X}:{S_X+3}], 0 offen offset:{j*64}", ("panel",))
    k.e("v_lshrrev_b32 v5, 3, v1")
    k.e("v_and_b32 v6, 7, v1")
    k.e("v_xor_b32 v6, v6, v5")
    k.e("v_lshlrev_b32 v6, 4, v6")
    k.e("v_mul_u32_u24 v5, 1280, v5")
    k.e(f"v_add_u32 v{V_DMA}, v5, v6")
    k.e("s_lshr_b32 s75, s64, 1")
    k.e("s_and_b32 s76, s64, 1")
    k.e("s_mul_i32 s73, s75, 10240")
    k.e("s_mul_i32 s77, s76, 5120")
    k.e("s_add_u32 s73, s73, s77")
    k.e("s_and_b32 s74, s66, 7")
    k.e("s_mul_i32 s74, s74, 102400")
    k.e("s_mul_i32 s77, s76, 51200")
    k.e("s_add_u32 s74, s74, s77")
    k.e("s_lshl_b32 s77, s75, 7")
    k.e("s_add_u32 s74, s74, s77")
    for Q in range(5):
        for i in range(5):
            k.e(f"s_add_u32 m0, s73, {Q*20480 + i*1024}")
            k.e(f"s_add_u32 s77, s74, {Q*256 + i*10240}")
            k.vmem(f"buffer_load_dwordx4 v{V_DMA}, s[{S_W}:{S_W+3}], s77 offen lds", ("dma", Q))
    k.e("v_and_b32 v5, 7, v2")
    k.e("v_xor_b32 v5, v5, v3")
    k.e("v_lshlrev_b32 v5, 4, v5")
    k.e("v_lshlrev_b32 v6, 7, v2")
    k.e(f"v_add_u32 v{V_B0}, v5, v6")
    k.e(f"v_xor_b32 v{V_B1}, 64, v{V_B0}")
    k.e(f"v_add_u32 v{V_B2}, 61440, v{V_B0}")
    k.e(f"v_add_u32 v{V_B3}, 61440, v{V_B1}")
    for i in range(4):
        k.e(f"v_mov_b32 v{V_ONES+i}, 0x3f803f80")
    k.e("v_xor_b32 v5, 16, v1")
    k.e(f"v_lshlrev_b32 v{V_X16}, 2, v5")
    k.e("v_xor_b32 v5, 32, v1")
    k.e(f"v_lshlrev_b32 v{V_X32}, 2, v5")
    k.wait_vm(lambda t: t == ("panel",))
    stats(k, panel, V_ONES, V_T, V_MEAN, V_RINV, V_X16, V_X32)
    for r in range(4):
        k.e("v_lshlrev_b32 v5, 2, v3")
        k.e(f"v_add_u32 v5, {r}, v5")
        k.e("v_lshlrev_b32 v5, 2, v5")
        for b in range(2):
            k.lds(f"ds_bpermute_b32 v{V_RM + b*4 + r}, v5, v{V_MEAN[b]}", "st")
            k.lds(f"ds_bpermute_b32 v{V_RR + b*4 + r}, v5, v{V_RINV[b]}", "st")
        k.wait_lg_all()
    k.e("s_cmp_lt_u32 s66, 8")
    k.e("s_cselect_b32 s78, 1.0, -1.0")
    for i in range(8):
        k.e(f"v_mul_f32 v{V_RR+i}, s78, v{V_RR+i}")

    k.e("s_mul_hi_u32 s80, s2, 0xcccccccd")
    k.e("s_lshr_b32 s80, s80, 4")
    k.e("s_mul_i32 s81, s80, 20")
    k.e("s_sub_u32 s81, s2, s81")
    k.e("s_mul_hi_u32 s82, s2, 0xcccccccd")
    k.e("s_lshr_b32 s82, s82, 2")
    k.e("s_mul_i32 s83, s82, 5")
    k.e("s_sub_u32 s83, s2, s83")
    k.e("v_and_b32 v5, 127, v0")
    k.e("v_lshrrev_b32 v6, 7, v0")
    k.e(f"v_mul_u32_u24 v7, {8*3072}, v6")
    k.e("v_lshlrev_b32 v8, 1, v5")
    k.e(f"v_add_u32 v{V_TL0}, v7, v8")
    k.e(f"v_add_u32 v{V_TL1}, {2*8*3072}, v{V_TL0}")
    k.e("v_mul_u32_u24 v7, 1280, v5")
    k.e("v_lshlrev_b32 v8, 4, v6")
    k.e(f"v_add_u32 v{V_TS}, v7, v8")
    k.e(f"v_mul_u32_u24 v7, {8*1280}, v6")
    k.e("v_lshlrev_b32 v8, 1, v5")
    k.e(f"v_add_u32 v{V_DL0}, v7, v8")
    k.e(f"v_add_u32 v{V_DL1}, {2*8*1280}, v{V_DL0}")
    k.e("v_mul_u32_u24 v7, 3072, v5")
    k.e("v_lshlrev_b32 v8, 4, v6")
    k.e(f"v_add_u32 v{V_DS}, v7, v8")
    k.e(f"s_mul_i32 s84, s81, {32*3072}")
    k.e("s_lshl_b32 s85, s80, 8")
    k.e("s_add_u32 s84, s84, s85")
    k.e(f"s_mul_i32 s86, s82, {32*1280}")
    k.e("s_lshl_b32 s85, s83, 8")
    k.e("s_add_u32 s86, s86, s85")
    k.e("s_cmp_ge_u32 s2, 240")
    k.e("s_cbranch_scc1 k1_skip_tload")
    for m, (srd, base, stride, vl) in enumerate(((S_WG, 84, 3072, V_TL0), (S_WU, 84, 3072, V_TL0), (S_WD, 86, 1280, V_DL0))):
        for e8 in range(8):
            k.e(f"s_add_u32 s85, s{base}, {e8*stride}")
            for i in range(2):
                r = (m * 2 + i) * 4 + e8 // 2
                dst = f"a{100 + r}" if e8 & 1 else f"v{TREG + r}"
                k.vmem(f"buffer_load_ushort {dst}, v{vl+i}, s[{srd}:{srd+3}], s85 offen", ("t",))
    k.label("k1_skip_tload")
    nt = sum(1 for t in k.vm if t == ("t",))
    k.vm = [t for t in k.vm if t != ("t",)]

    def dsread(j, blk):
        q, hh = j >> 1, j & 1
        off = q * 10240 + blk * 2048
        base = V_B0 + hh
        if q >= 6:
            off -= 61440
            base += 2
        k.lds(f"ds_read_b128 {a4(sf(j&1, blk))}, v{base} offset:{off}", ("sf", j))

    k.wait_vm(lambda t: t == ("dma", 0))
    k.e("s_barrier")
    for blk in range(5):
        dsread(0, blk)
    for j in range(20):
        if (j + 1) % 4 == 0 and j + 1 < 20:
            Q = (j + 1) // 4
            k.wait_vm(lambda t: t == ("dma", Q))
            k.e("s_barrier")
        k.wait_lg(lambda t: t == ("sf", j))
        for blk in range(5):
            if j + 1 < 20:
                dsread(j + 1, blk)
            for b in range(2):
                cin = "0" if j == 0 else a4(acc(b, blk))
                k.e(f"v_mfma_f32_16x16x32_bf16 {a4(acc(b,blk))}, {v4(panel(b,j))}, {a4(sf(j&1,blk))}, {cin}")
            cin = "0" if j == 0 else a4(accw(blk))
            k.e(f"v_mfma_f32_16x16x32_bf16 {a4(accw(blk))}, {v4(V_ONES)}, {a4(sf(j&1,blk))}, {cin}")
    k.e("s_nop 7")
    k.e("s_nop 7")
    k.e("v_lshlrev_b32 v5, 12, v2")
    k.e("v_lshlrev_b32 v6, 4, v3")
    k.e("v_add_u32 v5, v5, v6")
    k.e("s_lshl_b32 s77, s64, 6")
    k.e(f"v_add_u32 v{V_ST}, s77, v5")
    k.e(f"s_mul_i32 s79, s66, {80*4096}")
    k.e("s_lshl_b32 s77, s65, 8")
    k.e("s_add_u32 s79, s79, s77")
    if L.ABT_OFF:
        k.e(f"s_add_u32 s79, s79, {L.ABT_OFF}")
    EP = 16
    for blk in range(5):
        w = EP + blk * 16
        k.e(f"v_accvgpr_read_b32 v{w+12}, a{accw(blk)}")
        for b in range(2):
            for r in range(4):
                k.e(f"v_accvgpr_read_b32 v{w+b*4+r}, a{acc(b,blk)+r}")
        for b in range(2):
            for r in range(4):
                k.e(f"v_fma_f32 v{w+b*4+r}, -v{V_RM+b*4+r}, v{w+12}, v{w+b*4+r}")
                k.e(f"v_mul_f32 v{w+b*4+r}, v{V_RR+b*4+r}, v{w+b*4+r}")
        for p in range(4):
            k.e(f"v_cvt_pk_bf16_f32 v{w+8+p}, v{w+2*p}, v{w+2*p+1}")
        k.e(f"s_add_u32 s77, s79, {blk*16*4096}")
        k.vmem(f"buffer_store_dwordx4 {v4(w+8)}, v{V_ST}, s[{S_WS}:{S_WS+3}], s77 offen", ("st",))
    k.e("s_cmp_ge_u32 s2, 240")
    k.e(f"s_cbranch_scc1 {k.name}_end")
    k.wait_vm_all()
    k.e(f"s_mul_i32 s84, s80, {128*1280}")
    k.e("s_lshl_b32 s85, s81, 6")
    k.e("s_add_u32 s84, s84, s85")
    k.e(f"s_add_u32 s85, s84, {L.WUT_OFF}")
    k.e(f"s_add_u32 s84, s84, {L.WGT_OFF}")
    k.e(f"s_mul_i32 s86, s83, {128*3072}")
    k.e("s_lshl_b32 s87, s82, 6")
    k.e("s_add_u32 s86, s86, s87")
    k.e(f"s_add_u32 s86, s86, {L.WDT_OFF}")
    for r in range(24):
        k.e(f"v_accvgpr_read_b32 v{16 + r}, a{100 + r}")
    for r in range(24):
        k.e(f"v_lshl_or_b32 v{TREG + r}, v{16 + r}, 16, v{TREG + r}")
    for m, (sb, vs) in enumerate(((84, V_TS), (85, V_TS), (86, V_DS))):
        for i in range(2):
            k.vmem(f"buffer_store_dwordx4 {v4(TREG + (m*2+i)*4)}, v{vs}, s[{S_WS}:{S_WS+3}], s{sb} offen offset:{i*32}", ("st",))
    k.label(f"{k.name}_end")
    k.e("s_endpgm")
    return k, dict(vgpr=256, agpr=124, lds=102400, grid=256, block=256)


def gen_t2(which, NST=3):
    k = KB(f"{which}_kernel")
    prologue(k, 256)
    isk2 = which == "k2"
    S_A, S_B, S_WS, S_R, S_O = 40, 44, 48, 52, 56
    stride = 4096 if isk2 else 3072
    nsteps = 16 if isk2 else 6
    k.e("s_and_b32 s67, s2, 7")
    k.e("s_lshr_b32 s68, s2, 3")
    k.e("s_lshl_b32 s65, s67, 2")
    k.e("s_lshr_b32 s69, s68, 3")
    k.e("s_add_u32 s65, s65, s69")
    k.e("s_and_b32 s66, s68, 7")
    k.e("s_waitcnt lgkmcnt(0)")
    k.srd(S_WS, P_WS, P_WS + 1, L.WS_USED)
    if isk2:
        k.e("s_cmp_lt_u32 s64, 2")
        k.e(f"s_cselect_b32 s70, s{P_CR}, s{P_CI}")
        k.e(f"s_cselect_b32 s71, s{P_CR+1}, s{P_CI+1}")
        k.srd(S_B, 70, 71, C_BYTES)
        k.srd(S_R, P_X, P_X + 1, X_BYTES)
        sA, sB, sR, sO = S_WS, S_B, S_R, S_WS
        r_off, o_off = 0, L.H_OFF
    else:
        k.srd(S_O, P_OUT, P_OUT + 1, X_BYTES)
        sA, sB, sR, sO = S_WS, S_WS, S_WS, S_O
        r_off, o_off = L.H_OFF, 0
    V_A = 8
    V_B = 13
    V_R = 17
    V_RES = 18
    V_LW, V_LR0, V_LR1 = 28, 29, 30
    V_WSA = 31
    STG = 32
    V_WS = 80
    assert STG + NST * 72 <= 256

    def stg(s, i):
        return STG + (s % NST) * 72 + i * 4

    def fa(s, hh, blk):
        return stg(s, hh * 9 + blk)

    def fb(s, hh, tb):
        return stg(s, hh * 9 + 5 + tb)

    def acc(blk, tb):
        return (blk * 4 + tb) * 4

    if isk2:
        k.e("s_and_b32 s72, s64, 1")
        k.e("s_lshl_b32 s72, s72, 11")
        k.e("s_lshr_b32 s73, s64, 1")
        k.e(f"s_mul_i32 s73, s73, {640*4096}")
        k.e("s_add_u32 s73, s73, s72")
        if L.ABT_OFF:
            k.e(f"s_add_u32 s73, s73, {L.ABT_OFF}")
        k.e("s_mov_b32 s74, s72")
    else:
        k.e("s_mul_i32 s72, s64, 768")
        k.e(f"s_add_u32 s73, s72, {L.WDT_OFF}")
        k.e(f"s_add_u32 s74, s72, {L.ACT_OFF}")
    k.e(f"s_mul_i32 s75, s66, {80*stride}")
    k.e("s_add_u32 s73, s73, s75")
    k.e(f"s_mul_i32 s75, s65, {64*stride}")
    k.e("s_add_u32 s74, s74, s75")
    k.e(f"v_mul_u32_u24 v5, {stride}, v2")
    k.e("v_lshlrev_b32 v6, 4, v3")
    k.e("v_add_u32 v5, v5, v6")
    k.e(f"v_add_u32 v{V_A}, s73, v5")
    for blk in range(1, 5):
        k.e(f"v_add_u32 v{V_A+blk}, {blk*16*stride}, v{V_A}")
    k.e(f"v_add_u32 v{V_B}, s74, v5")
    for tb in range(1, 4):
        k.e(f"v_add_u32 v{V_B+tb}, {tb*16*stride}, v{V_B}")

    def issue(s, i):
        hh, r = divmod(i, 9)
        off = s * 128 + hh * 64
        if r < 5:
            k.vmem(f"buffer_load_dwordx4 {v4(stg(s,i))}, v{V_A+r}, s[{sA}:{sA+3}], 0 offen offset:{off}", ("ld", s, hh))
        else:
            k.vmem(f"buffer_load_dwordx4 {v4(stg(s,i))}, v{V_B+r-5}, s[{sB}:{sB+3}], 0 offen offset:{off}", ("ld", s, hh))

    for s in range(min(NST - 1, nsteps)):
        for i in range(18):
            issue(s, i)
    k.e("s_lshl_b32 s75, s65, 6")
    k.e("s_lshl_b32 s76, s64, 4")
    k.e("s_add_u32 s75, s75, s76")
    k.e("v_add_u32 v5, s75, v2")
    k.e("v_mul_u32_u24 v5, 1280, v5")
    k.e("v_lshlrev_b32 v6, 3, v3")
    k.e("v_add_u32 v5, v5, v6")
    k.e("s_mul_i32 s75, s66, 160")
    k.e(f"v_add_u32 v{V_R}, s75, v5")
    k.e(f"s_mov_b32 s76, {r_off}")
    for blk in range(5):
        k.vmem(f"buffer_load_dwordx2 {v2(V_RES+2*blk)}, v{V_R}, s[{sR}:{sR+3}], s76 offen offset:{blk*32}", ("res",))
    if isk2:
        k.e("s_mul_i32 s77, s2, 12")
        k.e("s_mul_i32 s78, s64, 3")
        k.e("s_add_u32 s77, s77, s78")
        k.e("s_mul_i32 s78, s77, 1280")
        k.e(f"s_add_u32 s78, s78, {L.WGT_OFF}")
        k.e(f"v_lshlrev_b32 v{V_WSA}, 2, v1")
        for i in range(3):
            k.e(f"s_add_u32 s79, s78, {i*1280}")
            for m in range(5):
                k.vmem(f"buffer_load_dword a{V_WS+i*5+m}, v{V_WSA}, s[{S_WS}:{S_WS+3}], s79 offen offset:{m*256}", ("ws",))
    k.e("v_lshlrev_b32 v5, 4, v1")
    k.e("s_mul_i32 s75, s64, 20480")
    k.e(f"v_add_u32 v{V_LW}, s75, v5")
    k.e("s_mul_i32 s75, s64, 5120")
    k.e(f"v_add_u32 v{V_LR0}, s75, v5")
    k.e(f"v_add_u32 v{V_LR1}, 40960, v{V_LR0}")

    for s in range(nsteps):
        nxt = s + NST - 1
        pend = list(range(18)) if nxt < nsteps else []
        for hh in range(2):
            k.wait_vm(lambda t: t == ("ld", s, hh))
            cnt = 0
            for blk in range(5):
                for tb in range(4):
                    cin = "0" if (s == 0 and hh == 0) else a4(acc(blk, tb))
                    k.e(f"v_mfma_f32_16x16x32_bf16 {a4(acc(blk,tb))}, {v4(fa(s,hh,blk))}, {v4(fb(s,hh,tb))}, {cin}")
                    cnt += 1
                    if cnt % 2 == 0 and pend and (hh == 1 or len(pend) > 9):
                        issue(nxt, pend.pop(0))
        while pend:
            issue(nxt, pend.pop(0))
    k.e("s_nop 7")
    k.e("s_nop 7")
    for tb in range(4):
        for blk in range(5):
            k.lds(f"ds_write_b128 v{V_LW}, {a4(acc(blk,tb))} offset:{(tb*5+blk)*1024}", "w")
    k.wait_lg_all()
    k.e("s_barrier")
    Q = STG

    def q(src, blk):
        return Q + (src * 5 + blk) * 4

    for blk in range(5):
        for src in range(4):
            base = V_LR0 if src < 2 else V_LR1
            off = (src % 2) * 20480 + blk * 1024
            k.lds(f"ds_read_b128 {v4(q(src,blk))}, v{base} offset:{off}", ("q", blk))
    k.wait_vm(lambda t: t == ("res",))
    T = Q + 80
    k.e(f"s_mov_b32 s76, {o_off}")
    for blk in range(5):
        k.wait_lg(lambda t: t == ("q", blk))
        if isk2:
            for r in range(4):
                k.e(f"v_add_f32 v{q(0,blk)+r}, v{q(0,blk)+r}, v{q(1,blk)+r}")
                k.e(f"v_add_f32 v{q(2,blk)+r}, v{q(2,blk)+r}, v{q(3,blk)+r}")
            for p in range(2):
                k.e(f"v_cvt_pk_bf16_f32 v{T+p}, v{q(0,blk)+2*p}, v{q(0,blk)+2*p+1}")
                k.e(f"v_cvt_pk_bf16_f32 v{T+2+p}, v{q(2,blk)+2*p}, v{q(2,blk)+2*p+1}")
            for p in range(2):
                k.e(f"v_lshlrev_b32 v{T+4}, 16, v{T+p}")
                k.e(f"v_and_b32 v{T+5}, 0xffff0000, v{T+p}")
                k.e(f"v_lshlrev_b32 v{T+6}, 16, v{T+2+p}")
                k.e(f"v_and_b32 v{T+7}, 0xffff0000, v{T+2+p}")
                k.e(f"v_add_f32 v{T+4}, v{T+4}, v{T+6}")
                k.e(f"v_add_f32 v{T+5}, v{T+5}, v{T+7}")
                k.e(f"v_cvt_pk_bf16_f32 v{T+8+p}, v{T+4}, v{T+5}")
        else:
            for r in range(4):
                k.e(f"v_add_f32 v{q(0,blk)+r}, v{q(0,blk)+r}, v{q(1,blk)+r}")
                k.e(f"v_add_f32 v{q(2,blk)+r}, v{q(2,blk)+r}, v{q(3,blk)+r}")
                k.e(f"v_add_f32 v{q(0,blk)+r}, v{q(0,blk)+r}, v{q(2,blk)+r}")
            for p in range(2):
                k.e(f"v_cvt_pk_bf16_f32 v{T+8+p}, v{q(0,blk)+2*p}, v{q(0,blk)+2*p+1}")
        o = T + 12 + 2 * blk
        for p in range(2):
            rr = V_RES + 2 * blk + p
            k.e(f"v_lshlrev_b32 v{T+4}, 16, v{T+8+p}")
            k.e(f"v_and_b32 v{T+5}, 0xffff0000, v{T+8+p}")
            k.e(f"v_lshlrev_b32 v{T+6}, 16, v{rr}")
            k.e(f"v_and_b32 v{T+7}, 0xffff0000, v{rr}")
            k.e(f"v_add_f32 v{T+4}, v{T+4}, v{T+6}")
            k.e(f"v_add_f32 v{T+5}, v{T+5}, v{T+7}")
            k.e(f"v_cvt_pk_bf16_f32 v{o+p}, v{T+4}, v{T+5}")
        k.vmem(f"buffer_store_dwordx2 {v2(o)}, v{V_R}, s[{sO}:{sO+3}], s76 offen offset:{blk*32}", ("st",))
    if isk2:
        k.wait_vm(lambda t: t == ("ws",))
        k.e(f"v_mov_b32 v{T}, 0x3f803f80")
        for i in range(3):
            k.e(f"v_mov_b32 v{T+1+i}, 0")
        for i in range(3):
            for m in range(5):
                k.e(f"v_accvgpr_read_b32 v{T+8+i*5+m}, a{V_WS+i*5+m}")
        for i in range(3):
            for m in range(5):
                k.e(f"v_dot2_f32_bf16 v{T+1+i}, v{T+8+i*5+m}, v{T}, v{T+1+i}")
        k.e("s_nop 3")
        for sh in (1, 2, 4, 8, 16, 32):
            k.e(f"v_xor_b32 v{T+4}, {sh}, v1")
            k.e(f"v_lshlrev_b32 v{T+4}, 2, v{T+4}")
            for i in range(3):
                k.lds(f"ds_bpermute_b32 v{T+5+i}, v{T+4}, v{T+1+i}", "b")
            k.wait_lg_all()
            for i in range(3):
                k.e(f"v_add_f32 v{T+1+i}, v{T+1+i}, v{T+5+i}")
        k.e("s_lshl_b32 s78, s77, 2")
        k.e(f"s_add_u32 s78, s78, {L.WSUM_OFF}")
        k.e(f"v_mov_b32 v{T+4}, 0")
        for i in range(3):
            k.vmem(f"buffer_store_dword v{T+1+i}, v{T+4}, s[{S_WS}:{S_WS+3}], s78 offen offset:{i*4}", ("st",))
    k.label(f"{k.name}_end")
    k.e("s_endpgm")
    return k, dict(vgpr=256, agpr=96, lds=81920, grid=256, block=256)


def gen_k3():
    k = KB("k3_kernel")
    prologue(k, 256)
    S_WS = 48
    NSLOT = 6
    CH = 24576
    k.e("s_and_b32 s67, s2, 7")
    k.e("s_lshr_b32 s68, s2, 3")
    k.e("s_lshl_b32 s65, s67, 1")
    k.e("s_lshr_b32 s69, s68, 4")
    k.e("s_add_u32 s65, s65, s69")
    k.e("s_and_b32 s66, s68, 15")
    k.e("s_waitcnt lgkmcnt(0)")
    k.srd(S_WS, P_WS, P_WS + 1, L.WS_USED)
    PANEL = 16

    def panel(b, j):
        return PANEL + (b * 20 + j) * 4

    V_P0, V_P1, V_DMA = 176, 177, 178
    V_B = 180
    V_ONES = 188
    V_X16, V_X32 = 192, 193
    V_T = 194
    V_MEAN = [202, 203]
    V_RINV = [204, 205]
    V_WSUM = 208
    V_ST = 206
    V_WA = 207

    def acc(blk, b):
        return (blk * 2 + b) * 4

    def sf(buf, blk):
        return 96 + buf * 48 + blk * 4

    k.e("s_lshl_b32 s69, s65, 7")
    k.e("s_lshl_b32 s72, s64, 5")
    k.e("s_add_u32 s69, s69, s72")
    k.e("v_add_u32 v5, s69, v2")
    k.e("v_mul_u32_u24 v5, 1280, v5")
    k.e("v_lshlrev_b32 v6, 4, v3")
    k.e("v_add_u32 v5, v5, v6")
    k.e(f"v_add_u32 v{V_P0}, {L.H_OFF}, v5")
    k.e(f"v_add_u32 v{V_P1}, {16*1280}, v{V_P0}")
    for j in range(20):
        for b in range(2):
            k.vmem(f"buffer_load_dwordx4 {v4(panel(b,j))}, v{V_P0+b}, s[{S_WS}:{S_WS+3}], 0 offen offset:{j*64}", ("panel",))
    k.e("v_lshrrev_b32 v5, 3, v1")
    k.e("v_and_b32 v6, 7, v1")
    k.e("v_xor_b32 v6, v6, v5")
    k.e("v_lshlrev_b32 v6, 4, v6")
    k.e("v_lshrrev_b32 v7, 2, v5")
    k.e("v_lshlrev_b32 v7, 3, v7")
    k.e("v_and_b32 v5, 3, v5")
    k.e("v_add_u32 v5, v5, v7")
    k.e("v_mul_u32_u24 v5, 1280, v5")
    k.e(f"v_add_u32 v{V_DMA}, v5, v6")
    k.e("s_lshr_b32 s75, s64, 1")
    k.e("s_and_b32 s76, s64, 1")
    k.e(f"s_mul_i32 s74, s75, {1536*1280}")
    k.e(f"s_add_u32 s74, s74, {L.WGT_OFF}")
    k.e(f"s_mul_i32 s77, s66, {96*1280}")
    k.e("s_add_u32 s74, s74, s77")
    bs = [0, 16, 4, 20]

    def rowoff(n):
        return (n // 4) * 32 + bs[n % 4]

    k.e("s_cmp_eq_u32 s76, 0")
    for i in range(6):
        k.e(f"s_mov_b32 s77, {rowoff(i)*1280}")
        k.e(f"s_mov_b32 s78, {rowoff(6+i)*1280}")
        k.e(f"s_cselect_b32 s{80+i}, s77, s78")
        k.e(f"s_add_u32 s{80+i}, s{80+i}, s74")
        k.e("s_cmp_eq_u32 s76, 0")
    k.e("s_mul_i32 s73, s64, 6144")

    def dma(q):
        slot = q % NSLOT
        for i in range(6):
            k.e(f"s_add_u32 m0, s73, {slot*CH + i*1024}")
            k.e(f"s_add_u32 s77, s{80+i}, {q*128}")
            k.vmem(f"buffer_load_dwordx4 v{V_DMA}, s[{S_WS}:{S_WS+3}], s77 offen lds", ("dma", q))

    for q in range(NSLOT):
        dma(q)
    k.e("v_lshlrev_b32 v5, 5, v3")
    k.e("s_mul_i32 s77, s66, 384")
    k.e(f"s_add_u32 s77, s77, {L.WSUM_OFF}")
    k.e(f"v_add_u32 v{V_WA}, s77, v5")
    k.e("s_mov_b32 s78, 6144")
    for P in range(3):
        for m in range(2):
            for hf in range(2):
                sof = "0" if m == 0 else "s78"
                k.vmem(f"buffer_load_dwordx4 {v4(V_WSUM + P*16 + m*8 + hf*4)}, v{V_WA}, s[{S_WS}:{S_WS+3}], {sof} offen offset:{P*128 + hf*16}", ("wsum",))
    k.e("v_and_b32 v5, 7, v2")
    k.e("v_xor_b32 v5, v5, v3")
    k.e("v_lshlrev_b32 v5, 4, v5")
    k.e("v_lshlrev_b32 v6, 7, v2")
    k.e(f"v_add_u32 v{V_B}, v5, v6")
    k.e(f"v_xor_b32 v{V_B+1}, 64, v{V_B}")
    for rg in range(1, 3):
        for hh in range(2):
            k.e(f"v_add_u32 v{V_B+rg*2+hh}, {rg*2*CH}, v{V_B+hh}")
    for i in range(4):
        k.e(f"v_mov_b32 v{V_ONES+i}, 0x3f803f80")
    k.e("v_xor_b32 v5, 16, v1")
    k.e(f"v_lshlrev_b32 v{V_X16}, 2, v5")
    k.e("v_xor_b32 v5, 32, v1")
    k.e(f"v_lshlrev_b32 v{V_X32}, 2, v5")
    k.wait_vm(lambda t: t == ("panel",))
    stats(k, panel, V_ONES, V_T, V_MEAN, V_RINV, V_X16, V_X32)

    def dsread(j, blk):
        q, hh = j >> 1, j & 1
        slot = q % NSLOT
        off = (slot % 2) * CH + blk * 2048
        base = V_B + (slot // 2) * 2 + hh
        k.lds(f"ds_read_b128 {a4(sf(j&1, blk))}, v{base} offset:{off}", ("sf", j))

    k.wait_vm(lambda t: t == ("dma", 0))
    k.e("s_barrier")
    for blk in range(12):
        dsread(0, blk)
    for j in range(20):
        q = j >> 1
        if j & 1 and j + 1 < 20:
            k.wait_vm(lambda t: t == ("dma", q + 1))
            k.e("s_barrier")
            if q >= 1 and q - 1 + NSLOT < 10:
                dma(q - 1 + NSLOT)
        k.wait_lg(lambda t: t == ("sf", j))
        for blk in range(12):
            if j + 1 < 20:
                dsread(j + 1, blk)
            for b in range(2):
                cin = "0" if j == 0 else a4(acc(blk, b))
                k.e(f"v_mfma_f32_16x16x32_bf16 {a4(acc(blk,b))}, {a4(sf(j&1,blk))}, {v4(panel(b,j))}, {cin}")
    k.e("s_nop 7")
    k.e("s_nop 7")
    k.e("v_add_u32 v5, s69, v2")
    k.e("v_mul_u32_u24 v5, 3072, v5")
    k.e("v_lshlrev_b32 v6, 4, v3")
    k.e("v_add_u32 v5, v5, v6")
    k.e("s_mul_i32 s77, s66, 192")
    k.e(f"s_add_u32 s77, s77, {L.ACT_OFF}")
    k.e(f"v_add_u32 v{V_ST}, s77, v5")
    k.e(f"s_mov_b32 s78, {16*3072}")
    k.wait_vm(lambda t: t == ("wsum",))
    import math
    c0 = -2.0 * math.log2(math.e) * math.sqrt(2.0 / math.pi)
    c1 = c0 * 0.044715
    k.e(f"s_mov_b32 s79, {f32hex(c0)}")
    k.e(f"s_mov_b32 s80, {f32hex(c1)}")
    E = 16
    it = 0
    for P in range(3):
        for b in range(2):
            w = E + (it % 3) * 48
            it += 1
            G, U, Z, O = w, w + 8, w + 16, w + 24
            for i in range(8):
                k.e(f"v_accvgpr_read_b32 v{G+i}, a{acc(2*P + i//4, b) + i%4}")
                k.e(f"v_accvgpr_read_b32 v{U+i}, a{acc(6 + 2*P + i//4, b) + i%4}")
            for i in range(8):
                k.e(f"v_fma_f32 v{G+i}, -v{V_MEAN[b]}, v{V_WSUM+P*16+i}, v{G+i}")
                k.e(f"v_fma_f32 v{U+i}, -v{V_MEAN[b]}, v{V_WSUM+P*16+8+i}, v{U+i}")
            for i in range(8):
                k.e(f"v_mul_f32 v{G+i}, v{V_RINV[b]}, v{G+i}")
                k.e(f"v_mul_f32 v{U+i}, v{V_RINV[b]}, v{U+i}")
            for i in range(8):
                k.e(f"v_mul_f32 v{Z+i}, v{G+i}, v{G+i}")
            for i in range(8):
                k.e(f"v_mov_b32 v{O+i}, s79")
                k.e(f"v_fma_f32 v{Z+i}, v{Z+i}, s80, v{O+i}")
            for i in range(8):
                k.e(f"v_mul_f32 v{Z+i}, v{Z+i}, v{G+i}")
            for i in range(8):
                k.e(f"v_exp_f32 v{Z+i}, v{Z+i}")
            for i in range(8):
                k.e(f"v_add_f32 v{Z+i}, 1.0, v{Z+i}")
            for i in range(8):
                k.e(f"v_rcp_f32 v{Z+i}, v{Z+i}")
            for i in range(8):
                k.e(f"v_mul_f32 v{G+i}, v{G+i}, v{U+i}")
            for i in range(8):
                k.e(f"v_mul_f32 v{G+i}, v{G+i}, v{Z+i}")
            for p in range(4):
                k.e(f"v_cvt_pk_bf16_f32 v{O+8+p}, v{G+2*p}, v{G+2*p+1}")
            sof = "0" if b == 0 else "s78"
            k.vmem(f"buffer_store_dwordx4 {v4(O+8)}, v{V_ST}, s[{S_WS}:{S_WS+3}], {sof} offen offset:{P*64}", ("st",))
    k.label(f"{k.name}_end")
    k.e("s_endpgm")
    return k, dict(vgpr=256, agpr=192, lds=NSLOT * CH, grid=256, block=256)


def main():
    ks = [gen_k1(), gen_t2("k2"), gen_k3(), gen_t2("k4")]
    out = []
    hdr = open(f"cdna_kernels/{NAME}.s.ref").read().splitlines()
    for line in hdr:
        if line.startswith(";") and "@launch" not in line:
            out.append(line)
    for k, m in ks:
        out.append(f"; @launch kernel={k.name} grid=({m['grid']},1,1) block=({m['block']},1,1) lds={m['lds']}")
    out.append('.amdgcn_target "amdgcn-amd-amdhsa--gfx950"')
    out.append(".text")
    for k, m in ks:
        out.append(f".globl {k.name}")
        out.append(".p2align 8")
        out.append(f".type {k.name},@function")
        out.append(f"{k.name}:")
        out.append(k.text())
    out.append('.section .rodata,"a"')
    for k, m in ks:
        out.append(".p2align 6")
        out.append(f".amdhsa_kernel {k.name}")
        out.append(f"  .amdhsa_next_free_vgpr {m['vgpr'] + m['agpr']}")
        out.append("  .amdhsa_next_free_sgpr 102")
        out.append(f"  .amdhsa_accum_offset {m['vgpr']}")
        out.append("  .amdhsa_group_segment_fixed_size 0")
        out.append("  .amdhsa_kernarg_size 96")
        out.append("  .amdhsa_user_sgpr_count 2")
        out.append("  .amdhsa_user_sgpr_kernarg_segment_ptr 1")
        out.append("  .amdhsa_system_sgpr_workgroup_id_x 1")
        out.append(".end_amdhsa_kernel")
    path = sys.argv[1] if len(sys.argv) > 1 else f"cdna_kernels/{NAME}.s"
    open(path, "w").write("\n".join(out) + "\n")
    print("wrote", path, sum(len(k.L) for k, _ in ks), "lines")


main()
```

```python
ABF_OFF = 0
H_OFF = 0x500000
ACT_OFF = 0x780000
WGF_OFF = 0xD80000
WUF_OFF = WGF_OFF + 1536 * 640 * 2
WDF_OFF = WUF_OFF + 1536 * 640 * 2
WSUM_OFF = WDF_OFF + 1536 * 640 * 2
SYNC_OFF = (WSUM_OFF + 3072 * 4 + 0xffff) & ~0xffff
WS_USED = SYNC_OFF + 16384 + 4096
```

```python
import struct, sys
import layout as L

import os
STAMP = int(os.environ.get("STAMP", "0"))
STAMP_WG = int(os.environ.get("STAMP_WG", "0"))
STAMP_V = 4
NAME = "sequential_preLN__spectral_fnet__geglu_ffn__prompt"


def f32hex(x):
    return "0x%08x" % struct.unpack("<I", struct.pack("<f", x))[0]


class KB:
    def __init__(self, name):
        self.name = name
        self.L = []
        self.vm = []
        self.lg = []
        self.nst = 0

    def e(self, s):
        self.L.append("    " + s)

    def c(self, s):
        self.L.append("    ; " + s)

    def label(self, s):
        self.L.append(s + ":")

    def vmem(self, s, tag=None):
        self.e(s)
        self.vm.append(tag)

    def lds(self, s, tag=None):
        self.e(s)
        self.lg.append(tag)

    def wait_vm(self, pred):
        idx = max([i for i, t in enumerate(self.vm) if pred(t)], default=-1)
        if idx < 0:
            return
        n = len(self.vm) - 1 - idx
        self.e(f"s_waitcnt vmcnt({min(n, 63)})")
        self.vm = self.vm[idx + 1:]

    def wait_vm_all(self):
        self.e("s_waitcnt vmcnt(0)")
        self.vm = []

    def wait_lg(self, pred):
        idx = max([i for i, t in enumerate(self.lg) if pred(t)], default=-1)
        if idx < 0:
            return
        n = len(self.lg) - 1 - idx
        self.e(f"s_waitcnt lgkmcnt({min(n, 15)})")
        self.lg = self.lg[idx + 1:]

    def wait_lg_all(self):
        self.e("s_waitcnt lgkmcnt(0)")
        self.lg = []

    def srd(self, d, lo, hi, nbytes):
        self.e(f"s_mov_b32 s{d}, s{lo}")
        self.e(f"s_and_b32 s{d+1}, s{hi}, 0xffff")
        self.e(f"s_mov_b32 s{d+2}, {nbytes}")
        self.e(f"s_mov_b32 s{d+3}, 0x00020000")

    def stamp(self, last=False):
        if not STAMP:
            return
        i = self.nst
        self.nst += 1
        self.e("s_memtime s[98:99]")
        self.e("s_waitcnt lgkmcnt(0)")
        self.lg = []
        self.e(f"v_writelane_b32 v{STAMP_V}, s98, {i}")
        if i == 0 or last:
            self.e("s_memrealtime s[98:99]")
            self.e("s_waitcnt lgkmcnt(0)")
            self.e(f"v_writelane_b32 v{STAMP_V}, s98, {15 if last else 14}")

    def stamp_flush(self):
        if not STAMP:
            return
        self.stamp(True)
        lab = f"{self.name}_nodbg"
        self.e(f"s_cmp_lg_u32 s2, {STAMP_WG}")
        self.e(f"s_cbranch_scc1 {lab}")
        self.srd(96, P_DBG, P_DBG + 1, 256)
        self.e("v_lshlrev_b32 v5, 2, v1")
        self.e("s_lshl_b32 s95, s64, 6")
        self.e("v_add_u32 v5, s95, v5")
        self.e("v_mov_b32 v6, 0x10000")
        self.e("v_cmp_gt_u32 vcc, 16, v1")
        self.e("s_nop 1")
        self.e("v_cndmask_b32 v5, v6, v5, vcc")
        self.e(f"buffer_store_dword v{STAMP_V}, v5, s[96:99], 0 offen")
        self.label(lab)

    def text(self):
        return "\n".join(self.L)


def v4(b):
    return f"v[{b}:{b+3}]"


def a4(b):
    return f"a[{b}:{b+3}]"


def v2(b):
    return f"v[{b}:{b+1}]"


P_X, P_CR, P_CI, P_WR, P_WI, P_BX, P_WG, P_WU = 16, 18, 20, 22, 24, 26, 28, 30
P_WD, P_OUT, P_DBG, P_WS = 32, 34, 36, 38
X_BYTES = 2048 * 640 * 2
C_BYTES = 2048 * 2048 * 2
WH_BYTES = 640 * 640 * 2
WF_BYTES = 640 * 1536 * 2


def prologue(k, nwg):
    k.e(f"s_cmp_ge_u32 s2, {nwg}")
    k.e(f"s_cbranch_scc1 {k.name}_end")
    k.e("s_load_dwordx16 s[16:31], s[0:1], 0")
    k.e("s_load_dwordx8 s[32:39], s[0:1], 64")
    k.e("v_and_b32 v1, 63, v0")
    k.e("v_lshrrev_b32 v4, 6, v0")
    k.e("v_and_b32 v2, 15, v1")
    k.e("v_lshrrev_b32 v3, 4, v1")
    k.e("v_readfirstlane_b32 s64, v4")
    k.e("s_nop 1")
    k.stamp()


def bf16r(k, dst, src):
    k.e(f"v_cvt_pk_bf16_f32 v{dst}, v{src}, v{src}")
    k.e(f"v_lshlrev_b32 v{dst}, 16, v{dst}")


def stats_ops(k, asum, asq, vt, vmean, vrinv, v_diag):
    ops = []
    E = lambda x: ops.append(lambda: k.e(x))
    for b in range(2):
        t = vt + 6 * b
        for r in range(4):
            E(f"v_accvgpr_read_b32 v{t+r}, a{asq[b]+r}")
        E(f"v_accvgpr_read_b32 v{t+4}, a{asum[b]}")
    E("v_and_b32 v5, 3, v2")
    for r in range(1, 4):
        E(f"v_cmp_eq_u32 vcc, {r}, v5")
        E("s_nop 0")
        for b in range(2):
            t = vt + 6 * b
            E(f"v_cndmask_b32 v{t}, v{t}, v{t+r}, vcc")
    for b in range(2):
        t = vt + 6 * b
        ops.append(lambda t=t: k.lds(f"ds_bpermute_b32 v{t+1}, v{v_diag}, v{t}", "st"))
    ops.append(lambda: k.wait_lg(lambda x: x == "st"))
    inv = f32hex(1.0 / 640.0)
    for b in range(2):
        vs, vq = vt + 6 * b + 4, vt + 6 * b + 1
        E(f"v_mul_f32 v{vs}, {inv}, v{vs}")
        E(f"v_mul_f32 v{vq}, {inv}, v{vq}")
        E(f"v_fma_f32 v{vq}, -v{vs}, v{vs}, v{vq}")
        E(f"v_max_f32 v{vq}, 0, v{vq}")
        E(f"v_cvt_pk_bf16_f32 v{vmean[b]}, v{vs}, v{vs}")
        E(f"v_lshlrev_b32 v{vmean[b]}, 16, v{vmean[b]}")
        E(f"v_cvt_pk_bf16_f32 v{vq}, v{vq}, v{vq}")
        E(f"v_lshlrev_b32 v{vq}, 16, v{vq}")
        E(f"v_add_f32 v{vq}, {f32hex(1e-5)}, v{vq}")
        E(f"v_cvt_pk_bf16_f32 v{vq}, v{vq}, v{vq}")
        E(f"v_lshlrev_b32 v{vq}, 16, v{vq}")
        E(f"v_sqrt_f32 v{vq}, v{vq}")
        E("s_nop 0")
        E(f"v_cvt_pk_bf16_f32 v{vq}, v{vq}, v{vq}")
        E(f"v_lshlrev_b32 v{vq}, 16, v{vq}")
        E(f"v_rcp_f32 v{vrinv[b]}, v{vq}")
        E("s_nop 0")
    return ops


def spread(k, main, side):
    n, m = len(main), len(side)
    done = 0
    for i, f in enumerate(main):
        f()
        tgt = (i + 1) * m // n
        while done < tgt:
            side[done]()
            done += 1


def interleave(k, main, extra, every=1):
    extra = list(extra)
    for n, m in enumerate(main):
        m()
        if (n + 1) % every == 0 and extra:
            extra.pop(0)()
    for x in extra:
        x()


def gen_k1():
    k = KB("k1_kernel")
    prologue(k, 256)
    S_X, S_W, S_WS, S_T = 40, 44, 48, 52
    k.e("s_and_b32 s67, s2, 7")
    k.e("s_lshr_b32 s68, s2, 3")
    k.e("s_and_b32 s65, s67, 3")
    k.e("s_lshl_b32 s65, s65, 2")
    k.e("s_and_b32 s69, s68, 3")
    k.e("s_add_u32 s65, s65, s69")
    k.e("s_lshr_b32 s66, s67, 2")
    k.e("s_lshl_b32 s66, s66, 3")
    k.e("s_lshr_b32 s69, s68, 2")
    k.e("s_add_u32 s66, s66, s69")
    k.e("s_waitcnt lgkmcnt(0)")
    k.srd(S_X, P_X, P_X + 1, X_BYTES)
    k.e("s_cmp_lt_u32 s66, 8")
    k.e(f"s_cselect_b32 s70, s{P_WR}, s{P_WI}")
    k.e(f"s_cselect_b32 s71, s{P_WR+1}, s{P_WI+1}")
    k.srd(S_W, 70, 71, WH_BYTES)
    k.srd(S_WS, P_WS, P_WS + 1, L.WS_USED)

    NXR = 4
    XP = 16
    XF = 80
    TI, TO = 112, 144
    V_XL, V_DMA, V_B0, V_B1, V_B2, V_B3 = 176, 177, 178, 179, 180, 181
    V_XW0, V_XW1, V_XR = 182, 183, 184
    V_ONES = 188
    V_DIAG = 192
    V_T = 194
    V_MEAN = [206, 207]
    V_RINV = [208, 209]
    V_TL, V_TS = 210, 211
    V_RM = 212
    V_RR = 220
    V_ST = 228
    V_WX = 229
    V_WS = 230
    XLDS = 102400

    def acc(b, blk):
        return (b * 5 + blk) * 4

    def accw(blk):
        return 40 + blk * 4

    def sf(buf, hh, blk):
        return 60 + buf * 40 + (hh * 5 + blk) * 4

    ASUM = [140, 144]
    ASQ = [148, 152]

    def xf(buf, b, hh):
        return XF + buf * 16 + (b * 2 + hh) * 4

    k.e("s_lshl_b32 s69, s65, 7")
    k.e("s_lshl_b32 s72, s64, 5")
    k.e("s_add_u32 s69, s69, s72")
    k.e("v_lshrrev_b32 v5, 3, v1")
    k.e("v_and_b32 v6, 7, v1")
    k.e("v_add_u32 v7, s69, v5")
    k.e("v_mul_u32_u24 v7, 1280, v7")
    k.e("v_lshlrev_b32 v8, 4, v6")
    k.e(f"v_add_u32 v{V_XL}, v7, v8")
    k.e("v_xor_b32 v8, v6, v5")
    k.e("v_lshlrev_b32 v8, 4, v8")
    k.e("v_mul_u32_u24 v7, 1280, v5")
    k.e(f"v_add_u32 v{V_DMA}, v7, v8")
    k.e("s_lshr_b32 s75, s64, 1")
    k.e("s_and_b32 s76, s64, 1")
    k.e("s_mul_i32 s73, s75, 10240")
    k.e("s_mul_i32 s77, s76, 5120")
    k.e("s_add_u32 s73, s73, s77")
    k.e("s_and_b32 s74, s66, 7")
    k.e("s_mul_i32 s74, s74, 102400")
    k.e("s_mul_i32 s77, s76, 51200")
    k.e("s_add_u32 s74, s74, s77")
    k.e("s_lshl_b32 s77, s75, 7")
    k.e("s_add_u32 s74, s74, s77")
    for i in range(4):
        k.e(f"s_mov_b32 s{93+i}, {i*8*1280}")

    def xload_ops(q):
        return [lambda i=i: k.vmem(f"buffer_load_dwordx4 {v4(XP + (q%NXR)*16 + i*4)}, v{V_XL}, s[{S_X}:{S_X+3}], s{93+i} offen offset:{q*128}", ("x", q)) for i in range(4)]

    def wdma_ops(Q):
        ops = []
        for i in range(5):
            def f(i=i):
                k.e(f"s_add_u32 m0, s73, {Q*20480 + i*1024}")
                k.e(f"s_add_u32 s77, s74, {Q*256 + i*10240}")
                k.vmem(f"buffer_load_dwordx4 v{V_DMA}, s[{S_W}:{S_W+3}], s77 offen lds", ("dma", Q))
            ops.append(f)
        return ops

    for op in xload_ops(0) + wdma_ops(0) + xload_ops(1) + xload_ops(2) + wdma_ops(1):
        op()
    k.e("v_and_b32 v8, 3, v5")
    k.e("v_xor_b32 v8, v8, v6")
    k.e("v_lshlrev_b32 v8, 4, v8")
    k.e("v_lshlrev_b32 v7, 7, v5")
    k.e("v_add_u32 v7, v7, v8")
    k.e("s_lshl_b32 s72, s64, 12")
    k.e(f"s_add_u32 s72, s72, {XLDS}")
    k.e(f"v_add_u32 v{V_XW0}, s72, v7")
    k.e(f"v_xor_b32 v{V_XW1}, 64, v{V_XW0}")
    k.e("v_and_b32 v5, 7, v2")
    k.e("v_xor_b32 v5, v5, v3")
    k.e("v_lshlrev_b32 v5, 4, v5")
    k.e("v_lshlrev_b32 v6, 7, v2")
    k.e(f"v_add_u32 v{V_B0}, v5, v6")
    k.e(f"v_xor_b32 v{V_B1}, 64, v{V_B0}")
    k.e(f"v_add_u32 v{V_B2}, 61440, v{V_B0}")
    k.e(f"v_add_u32 v{V_B3}, 61440, v{V_B1}")
    k.e("v_lshrrev_b32 v6, 2, v2")
    k.e("v_lshlrev_b32 v6, 3, v6")
    k.e("v_and_b32 v7, 3, v2")
    k.e("v_add_u32 v6, v6, v7")
    k.e("v_lshlrev_b32 v6, 7, v6")
    k.e("v_add_u32 v6, v6, v5")
    k.e(f"v_add_u32 v{V_XR}, s72, v6")
    k.e(f"v_xor_b32 v{V_XR+1}, 64, v{V_XR}")
    k.e(f"v_add_u32 v{V_XR+2}, 512, v{V_XR}")
    k.e(f"v_add_u32 v{V_XR+3}, 512, v{V_XR+1}")
    for i in range(4):
        k.e(f"v_mov_b32 v{V_ONES+i}, 0x3f803f80")
    k.e("v_lshrrev_b32 v6, 2, v2")
    k.e("v_lshlrev_b32 v6, 4, v6")
    k.e("v_add_u32 v6, v6, v2")
    k.e(f"v_lshlrev_b32 v{V_DIAG}, 2, v6")
    k.e("v_mov_b32 v5, 0")
    for i in range(20):
        k.e(f"v_accvgpr_write_b32 a{40+i}, v5")

    k.e("s_mul_hi_u32 s80, s2, 0xcccccccd")
    k.e("s_lshr_b32 s80, s80, 4")
    k.e("s_mul_i32 s81, s80, 20")
    k.e("s_sub_u32 s81, s2, s81")
    k.e("s_mul_hi_u32 s82, s2, 0xaaaaaaab")
    k.e("s_lshr_b32 s82, s82, 5")
    k.e("s_mul_i32 s83, s82, 48")
    k.e("s_sub_u32 s83, s2, s83")
    k.e(f"s_mul_i32 s84, s81, {32*3072}")
    k.e("s_lshl_b32 s89, s80, 8")
    k.e("s_add_u32 s84, s84, s89")
    k.e(f"s_add_u32 s85, s84, {16*3072}")
    k.e("s_mov_b32 s86, 3072")
    k.e(f"s_mul_i32 s87, s80, {8*20*1024}")
    k.e("s_lshl_b32 s89, s81, 10")
    k.e("s_add_u32 s87, s87, s89")
    k.e(f"s_add_u32 s87, s87, {L.WGF_OFF}")
    k.e(f"s_mul_i32 s89, s64, {L.WUF_OFF - L.WGF_OFF}")
    k.e("s_add_u32 s87, s87, s89")
    k.e(f"s_mov_b32 s88, {20*1024}")
    k.e(f"v_mul_u32_u24 v5, {4*3072}, v3")
    k.e("v_lshlrev_b32 v6, 4, v2")
    k.e(f"v_add_u32 v{V_TL}, v5, v6")
    k.e(f"v_lshlrev_b32 v{V_TS}, 4, v1")
    k.e("s_cmp_eq_u32 s64, 0")
    k.e(f"s_cselect_b32 s70, s{P_WG}, s{P_WU}")
    k.e(f"s_cselect_b32 s71, s{P_WG+1}, s{P_WU+1}")
    k.e("s_cmp_lt_u32 s64, 2")
    k.e("s_cbranch_scc1 k1_tparam_done")
    k.e(f"s_mov_b32 s70, s{P_WD}")
    k.e(f"s_mov_b32 s71, s{P_WD+1}")
    k.e("s_lshl_b32 s89, s83, 1")
    k.e("s_lshr_b32 s90, s89, 3")
    k.e("s_lshl_b32 s90, s90, 7")
    k.e("s_and_b32 s91, s89, 7")
    k.e("s_add_u32 s90, s90, s91")
    k.e("s_mul_i32 s84, s90, 1280")
    k.e("s_lshl_b32 s91, s82, 8")
    k.e("s_add_u32 s84, s84, s91")
    k.e("s_add_u32 s85, s84, 1280")
    k.e(f"s_mov_b32 s86, {8*1280}")
    k.e(f"s_mul_i32 s87, s82, {8*48*1024}")
    k.e("s_lshl_b32 s91, s83, 10")
    k.e("s_add_u32 s87, s87, s91")
    k.e(f"s_add_u32 s87, s87, {L.WDF_OFF}")
    k.e("s_mov_b32 s88, 16")
    k.e(f"v_mul_u32_u24 v5, {32*1280}, v3")
    k.e(f"v_add_u32 v{V_TL}, v5, v6")
    k.e("v_lshrrev_b32 v5, 1, v2")
    k.e(f"v_mul_u32_u24 v5, {48*1024}, v5")
    k.e("v_lshlrev_b32 v6, 8, v3")
    k.e("v_add_u32 v5, v5, v6")
    k.e("v_and_b32 v6, 1, v2")
    k.e("v_lshlrev_b32 v6, 7, v6")
    k.e(f"v_add_u32 v{V_TS}, v5, v6")
    k.label("k1_tparam_done")
    k.srd(S_T, 70, 71, WF_BYTES)
    k.e("s_cmp_lt_u32 s2, 240")
    k.e("s_cselect_b32 s92, 1, 0")
    k.e("s_cmp_lt_u32 s64, 3")
    k.e("s_cselect_b32 s92, s92, 0")
    k.e("s_cmp_eq_u32 s92, 0")
    k.e("s_cselect_b32 s92, 0x40000000, 0")
    k.e(f"v_add_u32 v{V_TL}, s92, v{V_TL}")
    k.e(f"v_add_u32 v{V_TS}, s92, v{V_TS}")
    k.e("s_mov_b32 s90, 0x05040100")
    k.e("s_mov_b32 s91, 0x07060302")

    def tload_ops():
        ops = []
        for i in range(8):
            def f(i=i):
                k.e(f"s_mul_i32 s89, s86, {i % 4}")
                k.e(f"s_add_u32 s89, s89, s{84 + i // 4}")
                k.vmem(f"buffer_load_dwordx4 {v4(TI + i*4)}, v{V_TL}, s[{S_T}:{S_T+3}], s89 offen", ("t",))
            ops.append(f)
        return ops

    def tfin_ops():
        ops = [lambda: k.wait_vm(lambda t: t == ("t",))]
        for u in range(8):
            for p in range(4):
                ops.append(lambda u=u, p=p: k.e(f"v_perm_b32 v{TO + u*4 + p}, v{TI + (2*p+1)*4 + u//2}, v{TI + (2*p)*4 + u//2}, s{90 + (u&1)}"))
            def st(u=u):
                k.vmem(f"buffer_store_dwordx4 {v4(TO + u*4)}, v{V_TS}, s[{S_WS}:{S_WS+3}], s87 offen", ("st",))
                k.e("s_add_u32 s87, s87, s88")
            ops.append(st)
        return ops

    def fetch_ops(q):
        ops = []
        for i in range(4):
            ops.append(lambda i=i: k.lds(f"ds_write_b128 v{V_XW0 + (i&1)}, {v4(XP + (q%NXR)*16 + i*4)} offset:{i*1024}", ("f", q)))
        for b in range(2):
            for hh in range(2):
                ops.append(lambda b=b, hh=hh: k.lds(f"ds_read_b128 {v4(xf(q&1,b,hh))}, v{V_XR + b*2 + hh}", ("f", q)))
        for hh in range(2):
            for blk in range(5):
                off = q * 10240 + blk * 2048
                base = V_B0 + hh
                if q >= 6:
                    off -= 61440
                    base += 2
                ops.append(lambda hh=hh, blk=blk, off=off, base=base: k.lds(f"ds_read_b128 {a4(sf(q&1,hh,blk))}, v{base} offset:{off}", ("f", q)))
        return ops

    def pre_fetch(q):
        k.wait_vm(lambda t: t == ("x", q) or (q % 2 == 0 and t == ("dma", q // 2)))
        if q % 2 == 0:
            k.e("s_barrier")

    k.stamp()
    pre_fetch(0)
    k.stamp()
    for op in fetch_ops(0):
        op()
    for q in range(10):
        k.wait_lg_all()
        side = []
        if q + 1 < 10:
            pre_fetch(q + 1)
            side += fetch_ops(q + 1)
        if q + 3 < 10:
            side += xload_ops(q + 3)
        if q % 2 == 0 and q // 2 + 2 < 5:
            side += wdma_ops(q // 2 + 2)
        if q == 5:
            side += tload_ops()
        if q == 8:
            side += tfin_ops()
        main = []
        M = lambda x: main.append(lambda: k.e(x))
        for hh in range(2):
            first = (q == 0 and hh == 0)
            for b in range(2):
                M(f"v_mfma_f32_16x16x32_bf16 {a4(ASUM[b])}, {v4(V_ONES)}, {v4(xf(q&1,b,hh))}, {'0' if first else a4(ASUM[b])}")
                M(f"v_mfma_f32_16x16x32_bf16 {a4(ASQ[b])}, {v4(xf(q&1,b,hh))}, {v4(xf(q&1,b,hh))}, {'0' if first else a4(ASQ[b])}")
            for blk in range(5):
                for b in range(2):
                    cin = "0" if first else a4(acc(b, blk))
                    M(f"v_mfma_f32_16x16x32_bf16 {a4(acc(b,blk))}, {v4(xf(q&1,b,hh))}, {a4(sf(q&1,hh,blk))}, {cin}")
        spread(k, main, side)
        for hh in range(2):
            lab = f"k1_ws_{q}_{hh}"
            k.e(f"s_cmp_lg_u32 s64, {(2*q+hh) % 4}")
            k.e(f"s_cbranch_scc1 {lab}")
            for blk in range(5):
                k.e(f"v_mfma_f32_16x16x32_bf16 {a4(accw(blk))}, {v4(V_ONES)}, {a4(sf(q&1,hh,blk))}, {a4(accw(blk))}")
            k.label(lab)
        if q in (1, 5):
            k.stamp()
    k.stamp()
    k.e("s_nop 7")
    k.e(f"v_lshlrev_b32 v{V_WX}, 2, v1")
    k.e(f"v_add_u32 v5, s72, v{V_WX}")
    for blk in range(5):
        k.e(f"v_accvgpr_read_b32 v{V_WS+blk}, a{accw(blk)}")
    for blk in range(5):
        k.lds(f"ds_write_b32 v5, v{V_WS+blk} offset:{blk*256}", "wx")
    for op in stats_ops(k, ASUM, ASQ, V_T, V_MEAN, V_RINV, V_DIAG):
        op()
    k.wait_lg_all()
    k.e("s_barrier")
    k.e(f"v_add_u32 v{V_WX}, {XLDS}, v{V_WX}")
    for w in range(4):
        for blk in range(5):
            k.lds(f"ds_read_b32 v{V_WS + w*5 + blk}, v{V_WX} offset:{w*4096 + blk*256}", "wx")
    for r in range(4):
        k.e(f"v_lshlrev_b32 v{6+r}, 2, v3")
        k.e(f"v_add_u32 v{6+r}, {r}, v{6+r}")
        k.e(f"v_lshlrev_b32 v{6+r}, 2, v{6+r}")
        for b in range(2):
            k.lds(f"ds_bpermute_b32 v{V_RM + b*4 + r}, v{6+r}, v{V_MEAN[b]}", "st")
            k.lds(f"ds_bpermute_b32 v{V_RR + b*4 + r}, v{6+r}, v{V_RINV[b]}", "st")
    k.e("s_cmp_lt_u32 s66, 8")
    k.e("s_cselect_b32 s78, 1.0, -1.0")
    k.e(f"v_lshlrev_b32 v{V_ST}, 4, v1")
    k.e(f"s_mul_i32 s79, s66, {5*64*1024}")
    k.e("s_lshl_b32 s77, s65, 12")
    k.e("s_add_u32 s79, s79, s77")
    k.e("s_lshl_b32 s77, s64, 10")
    k.e("s_add_u32 s79, s79, s77")
    if L.ABF_OFF:
        k.e(f"s_add_u32 s79, s79, {L.ABF_OFF}")
    k.wait_lg_all()
    for blk in range(5):
        k.e(f"v_add_f32 v{V_WS+blk}, v{V_WS+blk}, v{V_WS+5+blk}")
        k.e(f"v_add_f32 v{V_WS+10+blk}, v{V_WS+10+blk}, v{V_WS+15+blk}")
        k.e(f"v_add_f32 v{V_WS+blk}, v{V_WS+blk}, v{V_WS+10+blk}")
    for i in range(8):
        k.e(f"v_mul_f32 v{V_RR+i}, s78, v{V_RR+i}")
    EP = 16
    for blk in range(5):
        w = EP + blk * 12
        for b in range(2):
            for r in range(4):
                k.e(f"v_accvgpr_read_b32 v{w+b*4+r}, a{acc(b,blk)+r}")
        for b in range(2):
            for r in range(4):
                k.e(f"v_fma_f32 v{w+b*4+r}, -v{V_RM+b*4+r}, v{V_WS+blk}, v{w+b*4+r}")
                k.e(f"v_mul_f32 v{w+b*4+r}, v{V_RR+b*4+r}, v{w+b*4+r}")
        for p in range(4):
            k.e(f"v_cvt_pk_bf16_f32 v{w+8+p}, v{w+2*p}, v{w+2*p+1}")
        k.e(f"s_add_u32 s77, s79, {blk*64*1024}")
        k.vmem(f"buffer_store_dwordx4 {v4(w+8)}, v{V_ST}, s[{S_WS}:{S_WS+3}], s77 offen", ("st",))
    k.stamp_flush()
    k.label(f"{k.name}_end")
    k.e("s_endpgm")
    return k, dict(vgpr=256, agpr=156, lds=102400 + 16384, grid=256, block=256)


def t2_reduce(k, isk2, acc, V_LW, V_LR0, V_LR1, Q, V_RES, store):
    for tb in range(4):
        for blk in range(5):
            k.lds(f"ds_write_b128 v{V_LW}, {a4(acc(blk,tb))} offset:{(tb*5+blk)*1024}", "w")
    k.wait_lg_all()
    k.e("s_barrier")

    def q(src, blk):
        return Q + (src * 5 + blk) * 4

    for blk in range(5):
        for src in range(4):
            base = V_LR0 if src < 2 else V_LR1
            off = (src % 2) * 20480 + blk * 1024
            k.lds(f"ds_read_b128 {v4(q(src,blk))}, v{base} offset:{off}", ("q", blk))
    k.wait_vm(lambda t: t == ("res",))
    T = Q + 80
    for blk in range(5):
        k.wait_lg(lambda t: t == ("q", blk))
        if isk2:
            for r in range(4):
                k.e(f"v_add_f32 v{q(0,blk)+r}, v{q(0,blk)+r}, v{q(1,blk)+r}")
                k.e(f"v_add_f32 v{q(2,blk)+r}, v{q(2,blk)+r}, v{q(3,blk)+r}")
            for p in range(2):
                k.e(f"v_cvt_pk_bf16_f32 v{T+p}, v{q(0,blk)+2*p}, v{q(0,blk)+2*p+1}")
                k.e(f"v_cvt_pk_bf16_f32 v{T+2+p}, v{q(2,blk)+2*p}, v{q(2,blk)+2*p+1}")
            for p in range(2):
                k.e(f"v_lshlrev_b32 v{T+4}, 16, v{T+p}")
                k.e(f"v_and_b32 v{T+5}, 0xffff0000, v{T+p}")
                k.e(f"v_lshlrev_b32 v{T+6}, 16, v{T+2+p}")
                k.e(f"v_and_b32 v{T+7}, 0xffff0000, v{T+2+p}")
                k.e(f"v_add_f32 v{T+4}, v{T+4}, v{T+6}")
                k.e(f"v_add_f32 v{T+5}, v{T+5}, v{T+7}")
                k.e(f"v_cvt_pk_bf16_f32 v{T+8+p}, v{T+4}, v{T+5}")
        else:
            for r in range(4):
                k.e(f"v_add_f32 v{q(0,blk)+r}, v{q(0,blk)+r}, v{q(1,blk)+r}")
                k.e(f"v_add_f32 v{q(2,blk)+r}, v{q(2,blk)+r}, v{q(3,blk)+r}")
                k.e(f"v_add_f32 v{q(0,blk)+r}, v{q(0,blk)+r}, v{q(2,blk)+r}")
            for p in range(2):
                k.e(f"v_cvt_pk_bf16_f32 v{T+8+p}, v{q(0,blk)+2*p}, v{q(0,blk)+2*p+1}")
        o = T + 12 + 2 * blk
        for p in range(2):
            rr = V_RES + 2 * blk + p
            k.e(f"v_lshlrev_b32 v{T+4}, 16, v{T+8+p}")
            k.e(f"v_and_b32 v{T+5}, 0xffff0000, v{T+8+p}")
            k.e(f"v_lshlrev_b32 v{T+6}, 16, v{rr}")
            k.e(f"v_and_b32 v{T+7}, 0xffff0000, v{rr}")
            k.e(f"v_add_f32 v{T+4}, v{T+4}, v{T+6}")
            k.e(f"v_add_f32 v{T+5}, v{T+5}, v{T+7}")
            k.e(f"v_cvt_pk_bf16_f32 v{o+p}, v{T+4}, v{T+5}")
        store(blk, o)


def t2_ids(k):
    k.e("s_and_b32 s67, s2, 7")
    k.e("s_lshr_b32 s68, s2, 3")
    k.e("s_and_b32 s65, s67, 3")
    k.e("s_lshl_b32 s65, s65, 3")
    k.e("s_and_b32 s69, s68, 7")
    k.e("s_add_u32 s65, s65, s69")
    k.e("s_lshr_b32 s66, s67, 2")
    k.e("s_lshl_b32 s66, s66, 2")
    k.e("s_lshr_b32 s69, s68, 3")
    k.e("s_add_u32 s66, s66, s69")


def t2_rowmajor_off(k, V_R):
    k.e("s_lshl_b32 s75, s65, 6")
    k.e("s_lshl_b32 s76, s64, 4")
    k.e("s_add_u32 s75, s75, s76")
    k.e("v_add_u32 v5, s75, v2")
    k.e("v_mul_u32_u24 v5, 1280, v5")
    k.e("v_lshlrev_b32 v6, 3, v3")
    k.e("v_add_u32 v5, v5, v6")
    k.e("s_mul_i32 s75, s66, 160")
    k.e(f"v_add_u32 v{V_R}, s75, v5")


def t2_hfrag_off(k, V_H, sdst):
    k.e(f"v_lshlrev_b32 v{V_H}, 4, v1")
    k.e("s_lshl_b32 s75, s65, 2")
    k.e("s_add_u32 s75, s75, s64")
    k.e(f"s_mul_i32 s75, s75, {20*1024}")
    k.e(f"s_add_u32 s75, s75, {L.H_OFF}")
    k.e("s_mul_i32 s76, s66, 5")
    for blk in range(5):
        k.e(f"s_add_u32 s77, s76, {blk}")
        k.e("s_lshr_b32 s78, s77, 1")
        k.e("s_lshl_b32 s78, s78, 10")
        k.e("s_and_b32 s77, s77, 1")
        k.e("s_lshl_b32 s77, s77, 3")
        k.e("s_add_u32 s78, s78, s77")
        k.e(f"s_add_u32 s{sdst+blk}, s78, s75")


def gen_k2(NST=3, NSLOT=4):
    k = KB("k2_kernel")
    prologue(k, 256)
    S_B, S_WS, S_R = 44, 48, 52
    t2_ids(k)
    k.e("s_waitcnt lgkmcnt(0)")
    k.srd(S_WS, P_WS, P_WS + 1, L.WS_USED)
    k.e("s_cmp_lt_u32 s64, 2")
    k.e(f"s_cselect_b32 s70, s{P_CR}, s{P_CI}")
    k.e(f"s_cselect_b32 s71, s{P_CR+1}, s{P_CI+1}")
    k.srd(S_B, 70, 71, C_BYTES)
    k.srd(S_R, P_X, P_X + 1, X_BYTES)
    V_A = 8
    V_DMA = 13
    V_BR = 14
    V_R, V_H = 16, 17
    V_RES = 18
    V_LW, V_LR0, V_LR1 = 28, 29, 30
    V_ONES = 216
    STG = 32
    BF = STG + NST * 40
    assert BF + 64 <= 216
    AW = 80
    AWS = 160

    def fa(s, hh, blk):
        return STG + (s % NST) * 40 + (hh * 5 + blk) * 4

    def fb(s, hh, tb):
        return BF + (s & 1) * 32 + (hh * 4 + tb) * 4

    def acc(blk, tb):
        return (blk * 4 + tb) * 4

    k.e(f"v_lshlrev_b32 v{V_H}, 4, v1")
    k.e("s_and_b32 s72, s2, 3")
    k.e("s_cmp_eq_u32 s72, s64")
    k.e("s_cselect_b32 s92, 1, 0")
    k.e("s_cmp_lt_u32 s2, 192")
    k.e("s_cselect_b32 s92, s92, 0")
    k.e(f"s_mul_i32 s93, s2, {20*1024}")
    k.e(f"s_add_u32 s93, s93, {L.WGF_OFF}")
    k.e("s_cmp_eq_u32 s92, 0")
    k.e("s_cbranch_scc1 k2_skip_ws")
    for j in range(20):
        if j % 4 == 0 and j:
            k.e("s_add_u32 s93, s93, 4096")
        k.e(f"buffer_load_dwordx4 {a4(AW + j*4)}, v{V_H}, s[{S_WS}:{S_WS+3}], s93 offen offset:{(j%4)*1024}")
    k.label("k2_skip_ws")
    k.e("s_lshr_b32 s72, s64, 1")
    k.e("s_mul_i32 s72, s72, 40")
    k.e("s_mul_i32 s73, s66, 5")
    k.e("s_add_u32 s72, s72, s73")
    k.e("s_lshl_b32 s72, s72, 16")
    k.e("s_and_b32 s73, s64, 1")
    k.e("s_lshl_b32 s74, s73, 15")
    k.e("s_add_u32 s72, s72, s74")
    if L.ABF_OFF:
        k.e(f"s_add_u32 s72, s72, {L.ABF_OFF}")
    k.e(f"v_add_u32 v{V_A}, s72, v{V_H}")
    for blk in range(1, 5):
        k.e(f"v_add_u32 v{V_A+blk}, {blk*65536}, v{V_A}")
    k.e("v_lshrrev_b32 v5, 3, v1")
    k.e("v_and_b32 v6, 7, v1")
    k.e("v_xor_b32 v6, v6, v5")
    k.e("v_lshlrev_b32 v6, 4, v6")
    k.e("v_lshlrev_b32 v5, 12, v5")
    k.e(f"v_add_u32 v{V_DMA}, v5, v6")
    k.e("s_lshl_b32 s74, s65, 18")
    k.e("s_lshl_b32 s73, s73, 11")
    k.e("s_add_u32 s74, s74, s73")
    k.e(f"s_mul_i32 s73, s64, {NSLOT*8192}")
    k.e("v_and_b32 v5, 7, v2")
    k.e("v_xor_b32 v5, v5, v3")
    k.e("v_lshlrev_b32 v5, 4, v5")
    k.e("v_lshlrev_b32 v6, 7, v2")
    k.e("v_add_u32 v5, v5, v6")
    k.e(f"v_add_u32 v{V_BR}, s73, v5")
    k.e(f"v_xor_b32 v{V_BR+1}, 64, v{V_BR}")

    def a_ops(s):
        ops = []
        for hh in range(2):
            for blk in range(5):
                def f(hh=hh, blk=blk):
                    if hh == 0 and blk == 0:
                        k.e(f"s_mov_b32 s80, {s*2048}")
                    k.vmem(f"buffer_load_dwordx4 {v4(fa(s,hh,blk))}, v{V_A+blk}, s[{S_WS}:{S_WS+3}], s80 offen offset:{hh*1024}", ("a", s))
                ops.append(f)
        return ops

    def c_ops(s):
        ops = []
        for i in range(8):
            def f(i=i):
                k.e(f"s_add_u32 m0, s73, {(s % NSLOT)*8192 + i*1024}")
                k.e(f"s_add_u32 s77, s74, {i*8*4096 + s*128}")
                k.vmem(f"buffer_load_dwordx4 v{V_DMA}, s[{S_B}:{S_B+3}], s77 offen lds", ("c", s))
            ops.append(f)
        return ops

    def b_ops(s):
        ops = []
        for hh in range(2):
            for tb in range(4):
                ops.append(lambda hh=hh, tb=tb: k.lds(f"ds_read_b128 {v4(fb(s,hh,tb))}, v{V_BR+hh} offset:{(s % NSLOT)*8192 + tb*2048}", ("b", s)))
        return ops

    NS = 16
    for s in range(NSLOT):
        for op in c_ops(s):
            op()
        if s < NST - 1:
            for op in a_ops(s):
                op()
    t2_rowmajor_off(k, V_R)
    for blk in range(5):
        k.vmem(f"buffer_load_dwordx2 {v2(V_RES+2*blk)}, v{V_R}, s[{S_R}:{S_R+3}], 0 offen offset:{blk*32}", ("res",))
    t2_hfrag_off(k, V_H, 84)
    k.e("v_lshlrev_b32 v5, 4, v1")
    k.e("s_mul_i32 s75, s64, 20480")
    k.e(f"v_add_u32 v{V_LW}, s75, v5")
    k.e("s_mul_i32 s75, s64, 5120")
    k.e(f"v_add_u32 v{V_LR0}, s75, v5")
    k.e(f"v_add_u32 v{V_LR1}, 40960, v{V_LR0}")
    for i in range(4):
        k.e(f"v_mov_b32 v{V_ONES+i}, 0x3f803f80")

    k.stamp()
    k.wait_vm(lambda t: t == ("c", 0))
    k.stamp()
    for op in b_ops(0):
        op()
    for s in range(NS):
        k.wait_lg_all()
        ex = []
        if s + 1 < NS:
            k.wait_vm(lambda t: t == ("c", s + 1) or t == ("a", s))
            ex += b_ops(s + 1)
        else:
            k.wait_vm(lambda t: t == ("a", s))
        if s + NSLOT < NS:
            ex += c_ops(s + NSLOT)
        if s + NST - 1 < NS:
            ex += a_ops(s + NST - 1)
        main = []
        for hh in range(2):
            for blk in range(5):
                for tb in range(4):
                    cin = "0" if (s == 0 and hh == 0) else a4(acc(blk, tb))
                    main.append(lambda hh=hh, blk=blk, tb=tb, cin=cin: k.e(f"v_mfma_f32_16x16x32_bf16 {a4(acc(blk,tb))}, {v4(fa(s,hh,blk))}, {v4(fb(s,hh,tb))}, {cin}"))
        interleave(k, main, ex)
        if s in (1, 5, 9, 13):
            k.stamp()
    k.stamp()
    k.e("s_nop 7")
    k.e("s_nop 7")
    k.e("s_barrier")

    def store(blk, o):
        k.vmem(f"buffer_store_dwordx2 {v2(o)}, v{V_H}, s[{S_WS}:{S_WS+3}], s{84+blk} offen", ("st",))

    t2_reduce(k, True, acc, V_LW, V_LR0, V_LR1, STG, V_RES, store)
    k.stamp_flush()
    k.e("s_cmp_eq_u32 s92, 0")
    k.e(f"s_cbranch_scc1 {k.name}_end")
    for j in range(20):
        cin = "0" if j == 0 else a4(AWS)
        k.e(f"v_mfma_f32_16x16x32_bf16 {a4(AWS)}, {a4(AW + j*4)}, {v4(V_ONES)}, {cin}")
    k.e("v_lshlrev_b32 v5, 4, v3")
    k.e("s_lshl_b32 s78, s2, 6")
    k.e(f"s_add_u32 s78, s78, {L.WSUM_OFF}")
    k.e("s_nop 7")
    k.e("s_nop 7")
    k.e(f"buffer_store_dwordx4 {a4(AWS)}, v5, s[{S_WS}:{S_WS+3}], s78 offen")
    k.label(f"{k.name}_end")
    k.e("s_endpgm")
    return k, dict(vgpr=256, agpr=164, lds=max(81920, 4 * NSLOT * 8192), grid=256, block=256)


def gen_k4(NST=3):
    k = KB("k4_kernel")
    prologue(k, 256)
    S_WS, S_O = 48, 56
    t2_ids(k)
    k.e("s_waitcnt lgkmcnt(0)")
    k.srd(S_WS, P_WS, P_WS + 1, L.WS_USED)
    k.srd(S_O, P_OUT, P_OUT + 1, X_BYTES)
    V_A = 8
    V_B = 13
    V_R, V_H = 17, 31
    V_RES = 18
    V_LW, V_LR0, V_LR1 = 28, 29, 30
    STG = 32
    assert STG + NST * 72 <= 256

    def fa(s, hh, blk):
        return STG + (s % NST) * 72 + (hh * 9 + blk) * 4

    def fb(s, hh, tb):
        return STG + (s % NST) * 72 + (hh * 9 + 5 + tb) * 4

    def acc(blk, tb):
        return (blk * 4 + tb) * 4

    k.e(f"v_lshlrev_b32 v{V_H}, 4, v1")
    k.e(f"s_mul_i32 s72, s64, {12*1024}")
    k.e(f"s_mul_i32 s73, s66, {5*48*1024}")
    k.e("s_add_u32 s73, s73, s72")
    k.e(f"s_add_u32 s73, s73, {L.WDF_OFF}")
    k.e(f"s_mul_i32 s74, s65, {4*48*1024}")
    k.e("s_add_u32 s74, s74, s72")
    k.e(f"s_add_u32 s74, s74, {L.ACT_OFF}")
    k.e(f"v_add_u32 v{V_A}, s73, v{V_H}")
    for blk in range(1, 5):
        k.e(f"v_add_u32 v{V_A+blk}, {blk*48*1024}, v{V_A}")
    k.e(f"v_add_u32 v{V_B}, s74, v{V_H}")
    for tb in range(1, 4):
        k.e(f"v_add_u32 v{V_B+tb}, {tb*48*1024}, v{V_B}")

    def ld_ops(s):
        ops = []
        for hh in range(2):
            for r in range(9):
                def f(hh=hh, r=r):
                    if hh == 0 and r == 0:
                        k.e(f"s_mov_b32 s80, {s*2048}")
                    if r < 5:
                        k.vmem(f"buffer_load_dwordx4 {v4(fa(s,hh,r))}, v{V_A+r}, s[{S_WS}:{S_WS+3}], s80 offen offset:{hh*1024}", ("ld", s, hh))
                    else:
                        k.vmem(f"buffer_load_dwordx4 {v4(fb(s,hh,r-5))}, v{V_B+r-5}, s[{S_WS}:{S_WS+3}], s80 offen offset:{hh*1024}", ("ld", s, hh))
                ops.append(f)
        return ops

    NS = 6
    if os.environ.get("LAT"):
        k.stamp()
        k.e(f"buffer_load_dwordx4 {v4(fa(0,0,0))}, v{V_A}, s[{S_WS}:{S_WS+3}], 0 offen")
        k.e("s_waitcnt vmcnt(0)")
        k.stamp()
        k.e(f"buffer_load_dwordx4 {v4(fa(0,0,0))}, v{V_B}, s[{S_WS}:{S_WS+3}], 0 offen")
        k.e("s_waitcnt vmcnt(0)")
        k.stamp()
        k.e(f"buffer_load_dwordx4 {v4(fa(0,0,0))}, v{V_B}, s[{S_WS}:{S_WS+3}], 0 offen offset:1024")
        k.e("s_waitcnt vmcnt(0)")
        k.stamp()
        k.e(f"buffer_load_dwordx4 {v4(fa(0,0,0))}, v{V_B+1}, s[{S_WS}:{S_WS+3}], 0 offen offset:1024")
        k.e("s_waitcnt vmcnt(0)")
        k.stamp()
    for s in range(NST - 1):
        for op in ld_ops(s):
            op()
    t2_hfrag_off(k, V_H, 84)
    for blk in range(5):
        k.vmem(f"buffer_load_dwordx2 {v2(V_RES+2*blk)}, v{V_H}, s[{S_WS}:{S_WS+3}], s{84+blk} offen", ("res",))
    t2_rowmajor_off(k, V_R)
    k.e("v_lshlrev_b32 v5, 4, v1")
    k.e("s_mul_i32 s75, s64, 20480")
    k.e(f"v_add_u32 v{V_LW}, s75, v5")
    k.e("s_mul_i32 s75, s64, 5120")
    k.e(f"v_add_u32 v{V_LR0}, s75, v5")
    k.e(f"v_add_u32 v{V_LR1}, 40960, v{V_LR0}")
    k.stamp()
    for s in range(NS):
        if s in (1, 3, 5):
            k.stamp()
        ex = ld_ops(s + NST - 1) if s + NST - 1 < NS else []
        for hh in range(2):
            k.wait_vm(lambda t: t == ("ld", s, hh))
            main = []
            for blk in range(5):
                for tb in range(4):
                    cin = "0" if (s == 0 and hh == 0) else a4(acc(blk, tb))
                    main.append(lambda hh=hh, blk=blk, tb=tb, cin=cin: k.e(f"v_mfma_f32_16x16x32_bf16 {a4(acc(blk,tb))}, {v4(fa(s,hh,blk))}, {v4(fb(s,hh,tb))}, {cin}"))
            interleave(k, main, ex[hh * 9:(hh + 1) * 9], every=2)
    k.e("s_nop 7")
    k.e("s_nop 7")

    def store(blk, o):
        k.vmem(f"buffer_store_dwordx2 {v2(o)}, v{V_R}, s[{S_O}:{S_O+3}], 0 offen offset:{blk*32}", ("st",))

    k.stamp()
    t2_reduce(k, False, acc, V_LW, V_LR0, V_LR1, STG, V_RES, store)
    k.stamp_flush()
    k.label(f"{k.name}_end")
    k.e("s_endpgm")
    return k, dict(vgpr=256, agpr=80, lds=81920, grid=256, block=256)


def gen_k3():
    k = KB("k3_kernel")
    prologue(k, 256)
    S_WS = 48
    NSLOT = 8
    CH = 16384
    k.e("s_and_b32 s67, s2, 7")
    k.e("s_lshr_b32 s68, s2, 3")
    k.e("s_and_b32 s65, s67, 1")
    k.e("s_lshl_b32 s65, s65, 3")
    k.e("s_and_b32 s69, s68, 7")
    k.e("s_add_u32 s65, s65, s69")
    k.e("s_lshr_b32 s66, s67, 1")
    k.e("s_lshl_b32 s66, s66, 2")
    k.e("s_lshr_b32 s69, s68, 3")
    k.e("s_add_u32 s66, s66, s69")
    k.e("s_waitcnt lgkmcnt(0)")
    k.srd(S_WS, P_WS, P_WS + 1, L.WS_USED)

    def panel(b, j):
        return (b * 20 + j) * 4

    ASUM = [160, 164]
    ASQ = [168, 172]

    def sf(buf, n):
        return 176 + buf * 16 + n * 4

    def acc(P, n, b):
        return 16 + (P & 1) * 32 + (n * 2 + b) * 4

    V_WSUM = 80
    V_P0, V_P1, V_L16 = 128, 129, 130
    V_B = 132
    V_ONES = 136
    V_DIAG = 140
    V_ST = 141
    V_WA = 142
    V_MEAN = [144, 145]
    V_RINV = [146, 147]
    V_C = 148
    V_ONE = 156
    V_T = 160

    k.e(f"v_lshlrev_b32 v{V_L16}, 4, v1")
    k.e("s_lshl_b32 s69, s65, 3")
    k.e("s_lshl_b32 s72, s64, 1")
    k.e("s_add_u32 s69, s69, s72")
    k.e(f"s_mul_i32 s72, s69, {20*1024}")
    k.e(f"s_add_u32 s72, s72, {L.H_OFF}")
    k.e(f"v_add_u32 v{V_P0}, s72, v{V_L16}")
    k.e(f"v_add_u32 v{V_P1}, {20*1024}, v{V_P0}")
    k.e("s_lshr_b32 s75, s64, 1")
    k.e("s_and_b32 s76, s64, 1")
    k.e(f"s_mul_i32 s74, s75, {96*20480}")
    k.e(f"s_add_u32 s74, s74, {L.WGF_OFF}")
    k.e(f"s_mul_i32 s77, s66, {6*20480}")
    k.e("s_add_u32 s74, s74, s77")
    k.e(f"s_mul_i32 s77, s76, 20480")
    k.e("s_add_u32 s74, s74, s77")
    k.e("s_lshl_b32 s73, s64, 12")

    def dma_ops(ci):
        P, q = divmod(ci, 5)
        ops = []
        for jj in range(4):
            def f(jj=jj):
                k.e(f"s_add_u32 m0, s73, {(ci % NSLOT)*CH + jj*1024}")
                k.e(f"s_add_u32 s77, s74, {2*P*20480 + (4*q+jj)*1024}")
                k.vmem(f"buffer_load_dwordx4 v{V_L16}, s[{S_WS}:{S_WS+3}], s77 offen lds", ("dma", ci))
            ops.append(f)
        return ops

    def panel_ops(q):
        ops = []
        for jj in range(4):
            for b in range(2):
                def f(jj=jj, b=b):
                    if jj == 0 and b == 0:
                        k.e(f"s_mov_b32 s80, {q*4096}")
                    k.vmem(f"buffer_load_dwordx4 {a4(panel(b,4*q+jj))}, v{V_P0+b}, s[{S_WS}:{S_WS+3}], s80 offen offset:{jj*1024}", ("panel", q))
                ops.append(f)
        return ops

    def wsum_ops():
        ops = []
        for n in range(12):
            sof = "0" if n < 6 else "s81"
            ops.append(lambda n=n, sof=sof: k.vmem(f"buffer_load_dwordx4 {v4(V_WSUM + n*4)}, v{V_WA}, s[{S_WS}:{S_WS+3}], {sof} offen offset:{(n%6)*64}", ("wsum",)))
        return ops

    for q in range(3):
        for op in dma_ops(q) + panel_ops(q):
            op()
    k.e("v_lshlrev_b32 v5, 4, v3")
    k.e("s_mul_i32 s77, s66, 384")
    k.e(f"s_add_u32 s77, s77, {L.WSUM_OFF}")
    k.e(f"v_add_u32 v{V_WA}, s77, v5")
    k.e("s_mov_b32 s81, 6144")
    k.e(f"v_mov_b32 v{V_B}, v{V_L16}")
    k.e(f"v_add_u32 v{V_B+1}, 65536, v{V_L16}")
    for i in range(4):
        k.e(f"v_mov_b32 v{V_ONES+i}, 0x3f803f80")
    k.e(f"v_mov_b32 v{V_ONE}, 1.0")
    k.e(f"v_mov_b32 v{V_ONE+1}, 1.0")
    k.e("v_lshrrev_b32 v6, 2, v2")
    k.e("v_lshlrev_b32 v6, 4, v6")
    k.e("v_add_u32 v6, v6, v2")
    k.e(f"v_lshlrev_b32 v{V_DIAG}, 2, v6")
    k.e(f"s_mul_i32 s77, s69, {48*1024}")
    k.e(f"s_mul_i32 s78, s66, {3*1024}")
    k.e("s_add_u32 s77, s77, s78")
    k.e(f"s_add_u32 s77, s77, {L.ACT_OFF}")
    k.e(f"v_add_u32 v{V_ST}, s77, v{V_L16}")
    k.e(f"s_mov_b32 s82, {48*1024}")
    import math
    c0 = -2.0 * math.log2(math.e) * math.sqrt(2.0 / math.pi)
    c1 = c0 * 0.044715
    k.e(f"s_mov_b32 s83, {f32hex(c0)}")
    k.e(f"s_mov_b32 s84, {f32hex(c1)}")

    def dsread_ops(st):
        P, j = divmod(st, 20)
        ci = P * 5 + j // 4
        slot = ci % NSLOT
        ops = []
        for n in range(4):
            off = (slot % 4) * CH + (n * 4 + j % 4) * 1024
            ops.append(lambda n=n, off=off: k.lds(f"ds_read_b128 {a4(sf(st&1, n))}, v{V_B + slot//4} offset:{off}", ("sf", st)))
        return ops

    def const_ops():
        ops = []
        E = lambda x: ops.append(lambda: k.e(x))
        for b in range(2):
            c = V_C + 4 * b
            E(f"v_sub_f32 v{c}, 0, v{V_MEAN[b]}")
            E(f"v_mul_f32 v{c+1}, s83, v{V_RINV[b]}")
            E(f"v_mul_f32 v{c+3}, v{V_RINV[b]}, v{V_RINV[b]}")
            E(f"v_mul_f32 v{c+2}, v{c+3}, v{V_RINV[b]}")
            E(f"v_mul_f32 v{c+2}, s84, v{c+2}")
        ops.append(lambda: k.wait_vm(lambda t: t == ("wsum",)))
        return ops

    def epi_ops(P, packed):
        ops = []
        E = lambda x: ops.append(lambda: k.e(x))
        for b in range(2):
            c = V_C + 4 * b
            Z = V_T + b * 12
            O = Z + 8
            G = [acc(P, i // 4, b) + i % 4 for i in range(8)]
            U = [acc(P, 2 + i // 4, b) + i % 4 for i in range(8)]
            WG = [V_WSUM + (2 * P + i // 4) * 4 + i % 4 for i in range(8)]
            WU = [V_WSUM + (6 + 2 * P + i // 4) * 4 + i % 4 for i in range(8)]
            if not packed:
                for i in range(8):
                    E(f"v_fma_f32 v{G[i]}, v{WG[i]}, v{c}, v{G[i]}")
                    E(f"v_fma_f32 v{U[i]}, v{WU[i]}, v{c}, v{U[i]}")
                for i in range(8):
                    E(f"v_mul_f32 v{Z+i}, v{G[i]}, v{G[i]}")
                    E(f"v_mul_f32 v{U[i]}, v{U[i]}, v{G[i]}")
                for i in range(8):
                    E(f"v_fma_f32 v{Z+i}, v{Z+i}, v{c+2}, v{c+1}")
                    E(f"v_mul_f32 v{U[i]}, v{U[i]}, v{c+3}")
                for i in range(8):
                    E(f"v_mul_f32 v{Z+i}, v{Z+i}, v{G[i]}")
                for i in range(8):
                    E(f"v_exp_f32 v{Z+i}, v{Z+i}")
                for i in range(8):
                    E(f"v_add_f32 v{Z+i}, 1.0, v{Z+i}")
                for i in range(8):
                    E(f"v_rcp_f32 v{Z+i}, v{Z+i}")
                for i in range(8):
                    E(f"v_mul_f32 v{U[i]}, v{U[i]}, v{Z+i}")
            else:
                lo = "op_sel_hi:[1,0,1]"
                for i in range(0, 8, 2):
                    E(f"v_pk_fma_f32 {v2(G[i])}, {v2(WG[i])}, {v2(c)}, {v2(G[i])} op_sel_hi:[1,0,1]")
                    E(f"v_pk_fma_f32 {v2(U[i])}, {v2(WU[i])}, {v2(c)}, {v2(U[i])} op_sel_hi:[1,0,1]")
                for i in range(0, 8, 2):
                    E(f"v_pk_mul_f32 {v2(Z+i)}, {v2(G[i])}, {v2(G[i])}")
                    E(f"v_pk_mul_f32 {v2(U[i])}, {v2(U[i])}, {v2(G[i])}")
                for i in range(0, 8, 2):
                    E(f"v_pk_fma_f32 {v2(Z+i)}, {v2(Z+i)}, {v2(c+2)}, {v2(c)} op_sel:[0,0,1] op_sel_hi:[1,0,1]")
                    E(f"v_pk_mul_f32 {v2(U[i])}, {v2(U[i])}, {v2(c+2)} op_sel:[0,1] op_sel_hi:[1,1]")
                for i in range(0, 8, 2):
                    E(f"v_pk_mul_f32 {v2(Z+i)}, {v2(Z+i)}, {v2(G[i])}")
                for i in range(8):
                    E(f"v_exp_f32 v{Z+i}, v{Z+i}")
                for i in range(0, 8, 2):
                    E(f"v_pk_add_f32 {v2(Z+i)}, {v2(Z+i)}, {v2(V_ONE)}")
                for i in range(8):
                    E(f"v_rcp_f32 v{Z+i}, v{Z+i}")
                for i in range(0, 8, 2):
                    E(f"v_pk_mul_f32 {v2(U[i])}, {v2(U[i])}, {v2(Z+i)}")
            for p in range(4):
                E(f"v_cvt_pk_bf16_f32 v{O+p}, v{U[2*p]}, v{U[2*p+1]}")
            sof = "0" if b == 0 else "s82"
            ops.append(lambda O=O, sof=sof: k.vmem(f"buffer_store_dwordx4 {v4(O)}, v{V_ST}, s[{S_WS}:{S_WS+3}], {sof} offen offset:{P*1024}", ("st",)))
        return ops

    dma_sched = {}
    nxt = 3
    for ci in range(15):
        n = 2 if ci in (3, 4, 5) else 1
        dma_sched[ci] = [c for c in range(nxt, min(nxt + n, 15))]
        nxt += len(dma_sched[ci])

    k.stamp()
    k.wait_vm(lambda t: t == ("dma", 0) or t == ("panel", 0))
    k.e("s_barrier")
    k.stamp()
    for op in dsread_ops(0):
        op()
    for P in range(3):
        pside = []
        if P == 1:
            pside = stats_ops(k, ASUM, ASQ, V_T, V_MEAN, V_RINV, V_DIAG) + const_ops() + epi_ops(0, False)
        if P == 2:
            pside = epi_ops(1, False)
        per = [[] for _ in range(20)]
        for i, op in enumerate(pside):
            per[1 + i * 18 // len(pside)].append(op)
        pend_vm = []
        for j in range(20):
            st = P * 20 + j
            ci = P * 5 + j // 4
            k.wait_lg(lambda t: t == ("sf", st))
            side = []
            if j % 4 == 3 and st + 1 < 60:
                k.wait_vm(lambda t: t == ("dma", ci + 1) or t == ("panel", ci + 1))
                k.e("s_barrier")
                for c in dma_sched[ci]:
                    pend_vm += dma_ops(c)
                if ci + 3 < 5:
                    pend_vm += panel_ops(ci + 3)
                if ci == 2:
                    pend_vm += wsum_ops()
            if st + 1 < 60:
                side += dsread_ops(st + 1)
            ntake = (len(pend_vm) + 2) // 3 if j % 4 != 2 else len(pend_vm)
            side += pend_vm[:ntake]
            pend_vm = pend_vm[ntake:]
            side += per[j]
            main = []
            M = lambda x: main.append(lambda: k.e(x))
            for n in range(4):
                for b in range(2):
                    cin = "0" if j == 0 else v4(acc(P, n, b))
                    M(f"v_mfma_f32_16x16x32_bf16 {v4(acc(P,n,b))}, {a4(sf(st&1,n))}, {a4(panel(b,j))}, {cin}")
            if P == 0:
                for b in range(2):
                    M(f"v_mfma_f32_16x16x32_bf16 {a4(ASUM[b])}, {v4(V_ONES)}, {a4(panel(b,j))}, {'0' if j == 0 else a4(ASUM[b])}")
                    M(f"v_mfma_f32_16x16x32_bf16 {a4(ASQ[b])}, {a4(panel(b,j))}, {a4(panel(b,j))}, {'0' if j == 0 else a4(ASQ[b])}")
            spread(k, main, side)
        for op in pend_vm:
            op()
        k.stamp()
    k.e("s_nop 7")
    for op in epi_ops(2, True):
        op()
    k.stamp_flush()
    k.label(f"{k.name}_end")
    k.e("s_endpgm")
    return k, dict(vgpr=256, agpr=208, lds=NSLOT * CH, grid=256, block=256)


def main():
    ks = [gen_k1(), gen_k2(), gen_k3(), gen_k4()]
    out = []
    hdr = open(f"cdna_kernels/{NAME}.s.ref").read().splitlines()
    for line in hdr:
        if line.startswith(";") and "@launch" not in line:
            out.append(line)
    for k, m in ks:
        out.append(f"; @launch kernel={k.name} grid=({m['grid']},1,1) block=({m['block']},1,1) lds={m['lds']}")
    out.append('.amdgcn_target "amdgcn-amd-amdhsa--gfx950"')
    out.append(".text")
    for k, m in ks:
        out.append(f".globl {k.name}")
        out.append(".p2align 8")
        out.append(f".type {k.name},@function")
        out.append(f"{k.name}:")
        out.append(k.text())
    out.append('.section .rodata,"a"')
    for k, m in ks:
        out.append(".p2align 6")
        out.append(f".amdhsa_kernel {k.name}")
        out.append(f"  .amdhsa_next_free_vgpr {m['vgpr'] + m['agpr']}")
        out.append("  .amdhsa_next_free_sgpr 102")
        out.append(f"  .amdhsa_accum_offset {m['vgpr']}")
        out.append("  .amdhsa_group_segment_fixed_size 0")
        out.append("  .amdhsa_kernarg_size 96")
        out.append("  .amdhsa_user_sgpr_count 2")
        out.append("  .amdhsa_user_sgpr_kernarg_segment_ptr 1")
        out.append("  .amdhsa_system_sgpr_workgroup_id_x 1")
        out.append(".end_amdhsa_kernel")
    path = sys.argv[1] if len(sys.argv) > 1 else f"cdna_kernels/{NAME}.s"
    open(path, "w").write("\n".join(out) + "\n")
    print("wrote", path, sum(len(k.L) for k, _ in ks), "lines")


main()
```

```python
import struct, sys
import layout as L

import os
STAMP = int(os.environ.get("STAMP", "0"))
STAMP_WG = int(os.environ.get("STAMP_WG", "0"))
STAMP_V = 4
STSET = set(x for x in os.environ.get("STSET", "").split(",") if x)
STONLY = int(os.environ.get("STONLY", "1"))
NAME = "sequential_preLN__spectral_fnet__geglu_ffn__prompt"


def f32hex(x):
    return "0x%08x" % struct.unpack("<I", struct.pack("<f", x))[0]


class KB:
    def __init__(self, name):
        self.name = name
        self.L = []
        self.vm = []
        self.lg = []
        self.nst = 0

    def e(self, s):
        self.L.append("    " + s)

    def c(self, s):
        self.L.append("    ; " + s)

    def label(self, s):
        self.L.append(s + ":")

    def vmem(self, s, tag=None):
        self.e(s)
        self.vm.append(tag)

    def lds(self, s, tag=None):
        self.e(s)
        self.lg.append(tag)

    def wait_vm(self, pred):
        idx = max([i for i, t in enumerate(self.vm) if pred(t)], default=-1)
        if idx < 0:
            return
        n = len(self.vm) - 1 - idx
        self.e(f"s_waitcnt vmcnt({min(n, 63)})")
        self.vm = self.vm[idx + 1:]

    def wait_vm_all(self):
        self.e("s_waitcnt vmcnt(0)")
        self.vm = []

    def wait_lg(self, pred):
        idx = max([i for i, t in enumerate(self.lg) if pred(t)], default=-1)
        if idx < 0:
            return
        n = len(self.lg) - 1 - idx
        self.e(f"s_waitcnt lgkmcnt({min(n, 15)})")
        self.lg = self.lg[idx + 1:]

    def wait_lg_all(self):
        self.e("s_waitcnt lgkmcnt(0)")
        self.lg = []

    def srd(self, d, lo, hi, nbytes):
        self.e(f"s_mov_b32 s{d}, s{lo}")
        self.e(f"s_and_b32 s{d+1}, s{hi}, 0xffff")
        self.e(f"s_mov_b32 s{d+2}, {nbytes}")
        self.e(f"s_mov_b32 s{d+3}, 0x00020000")

    def stamp(self, last=False, tag=None):
        if not STAMP:
            return
        if tag is not None and tag not in STSET:
            return
        if tag is None and STSET and self.nst > 0 and not last and STONLY:
            return
        i = self.nst
        self.nst += 1
        self.e("s_memtime s[98:99]")
        self.e("s_waitcnt lgkmcnt(0)")
        self.lg = []
        self.e(f"v_writelane_b32 v{STAMP_V}, s98, {i}")
        if i == 0 or last:
            self.e("s_memrealtime s[98:99]")
            self.e("s_waitcnt lgkmcnt(0)")
            self.e(f"v_writelane_b32 v{STAMP_V}, s98, {15 if last else 14}")

    def stamp_flush(self):
        if not STAMP:
            return
        self.stamp(True)
        lab = f"{self.name}_nodbg"
        self.e(f"s_cmp_lg_u32 s2, {STAMP_WG}")
        self.e(f"s_cbranch_scc1 {lab}")
        self.srd(96, P_DBG, P_DBG + 1, 256)
        self.e("v_lshlrev_b32 v5, 2, v1")
        self.e("s_lshl_b32 s95, s64, 6")
        self.e("v_add_u32 v5, s95, v5")
        self.e("v_mov_b32 v6, 0x10000")
        self.e("v_cmp_gt_u32 vcc, 16, v1")
        self.e("s_nop 1")
        self.e("v_cndmask_b32 v5, v6, v5, vcc")
        self.e(f"buffer_store_dword v{STAMP_V}, v5, s[96:99], 0 offen")
        self.label(lab)

    def text(self):
        return "\n".join(self.L)


def v4(b):
    return f"v[{b}:{b+3}]"


def a4(b):
    return f"a[{b}:{b+3}]"


def v2(b):
    return f"v[{b}:{b+1}]"


P_X, P_CR, P_CI, P_WR, P_WI, P_BX, P_WG, P_WU = 16, 18, 20, 22, 24, 26, 28, 30
P_WD, P_OUT, P_DBG, P_WS = 32, 34, 36, 38
X_BYTES = 2048 * 640 * 2
C_BYTES = 2048 * 2048 * 2
WH_BYTES = 640 * 640 * 2
WF_BYTES = 640 * 1536 * 2


def prologue(k, nwg):
    k.e(f"s_cmp_ge_u32 s2, {nwg}")
    k.e(f"s_cbranch_scc1 {k.name}_end")
    k.e("s_load_dwordx16 s[16:31], s[0:1], 0")
    k.e("s_load_dwordx8 s[32:39], s[0:1], 64")
    k.e("v_and_b32 v1, 63, v0")
    k.e("v_lshrrev_b32 v4, 6, v0")
    k.e("v_and_b32 v2, 15, v1")
    k.e("v_lshrrev_b32 v3, 4, v1")
    k.e("v_readfirstlane_b32 s64, v4")
    k.e("s_nop 1")
    k.stamp()


def bf16r(k, dst, src):
    k.e(f"v_cvt_pk_bf16_f32 v{dst}, v{src}, v{src}")
    k.e(f"v_lshlrev_b32 v{dst}, 16, v{dst}")


def stats_ops(k, asum, asq, vt, vmean, vrinv, v_diag):
    ops = []
    E = lambda x: ops.append(lambda: k.e(x))
    for b in range(2):
        t = vt + 6 * b
        for r in range(4):
            E(f"v_accvgpr_read_b32 v{t+r}, a{asq[b]+r}")
        E(f"v_accvgpr_read_b32 v{t+4}, a{asum[b]}")
    E("v_and_b32 v5, 3, v2")
    for r in range(1, 4):
        E(f"v_cmp_eq_u32 vcc, {r}, v5")
        E("s_nop 0")
        for b in range(2):
            t = vt + 6 * b
            E(f"v_cndmask_b32 v{t}, v{t}, v{t+r}, vcc")
    for b in range(2):
        t = vt + 6 * b
        ops.append(lambda t=t: k.lds(f"ds_bpermute_b32 v{t+1}, v{v_diag}, v{t}", "st"))
    ops.append(lambda: k.wait_lg(lambda x: x == "st"))
    inv = f32hex(1.0 / 640.0)
    for b in range(2):
        vs, vq = vt + 6 * b + 4, vt + 6 * b + 1
        E(f"v_mul_f32 v{vs}, {inv}, v{vs}")
        E(f"v_mul_f32 v{vq}, {inv}, v{vq}")
        E(f"v_fma_f32 v{vq}, -v{vs}, v{vs}, v{vq}")
        E(f"v_max_f32 v{vq}, 0, v{vq}")
        E(f"v_cvt_pk_bf16_f32 v{vmean[b]}, v{vs}, v{vs}")
        E(f"v_lshlrev_b32 v{vmean[b]}, 16, v{vmean[b]}")
        E(f"v_cvt_pk_bf16_f32 v{vq}, v{vq}, v{vq}")
        E(f"v_lshlrev_b32 v{vq}, 16, v{vq}")
        E(f"v_add_f32 v{vq}, {f32hex(1e-5)}, v{vq}")
        E(f"v_cvt_pk_bf16_f32 v{vq}, v{vq}, v{vq}")
        E(f"v_lshlrev_b32 v{vq}, 16, v{vq}")
        E(f"v_sqrt_f32 v{vq}, v{vq}")
        E("s_nop 0")
        E(f"v_cvt_pk_bf16_f32 v{vq}, v{vq}, v{vq}")
        E(f"v_lshlrev_b32 v{vq}, 16, v{vq}")
        E(f"v_rcp_f32 v{vrinv[b]}, v{vq}")
        E("s_nop 0")
    return ops


def spread(k, main, side):
    n, m = len(main), len(side)
    done = 0
    for i, f in enumerate(main):
        f()
        tgt = (i + 1) * m // n
        while done < tgt:
            side[done]()
            done += 1


def interleave(k, main, extra, every=1):
    extra = list(extra)
    for n, m in enumerate(main):
        m()
        if (n + 1) % every == 0 and extra:
            extra.pop(0)()
    for x in extra:
        x()


def gen_k1():
    k = KB("k1_kernel")
    prologue(k, 256)
    S_X, S_W, S_WS, S_T = 40, 44, 48, 52
    k.e("s_and_b32 s67, s2, 7")
    k.e("s_lshr_b32 s68, s2, 3")
    k.e("s_and_b32 s65, s67, 3")
    k.e("s_lshl_b32 s65, s65, 2")
    k.e("s_and_b32 s69, s68, 3")
    k.e("s_add_u32 s65, s65, s69")
    k.e("s_lshr_b32 s66, s67, 2")
    k.e("s_lshl_b32 s66, s66, 3")
    k.e("s_lshr_b32 s69, s68, 2")
    k.e("s_add_u32 s66, s66, s69")
    k.e("s_waitcnt lgkmcnt(0)")
    k.srd(S_X, P_X, P_X + 1, X_BYTES)
    k.e("s_cmp_lt_u32 s66, 8")
    k.e(f"s_cselect_b32 s70, s{P_WR}, s{P_WI}")
    k.e(f"s_cselect_b32 s71, s{P_WR+1}, s{P_WI+1}")
    k.srd(S_W, 70, 71, WH_BYTES)
    k.srd(S_WS, P_WS, P_WS + 1, L.WS_USED)

    k.e("s_cmp_lg_u32 s2, 0")
    k.e("s_cbranch_scc1 k1_nozero")
    k.e("s_cmp_lg_u32 s64, 3")
    k.e("s_cbranch_scc1 k1_nozero")
    k.e("v_lshlrev_b32 v5, 8, v1")
    k.e("v_mov_b32 v6, 0")
    k.e(f"s_mov_b32 s70, {L.SYNC_OFF}")
    k.e(f"buffer_store_dword v6, v5, s[{S_WS}:{S_WS+3}], s70 offen")
    k.label("k1_nozero")
    NXR = 4
    XP = 16
    XF = 80
    TI, TO = 112, 144
    V_XL, V_DMA, V_B0, V_B1, V_B2, V_B3 = 176, 177, 178, 179, 180, 181
    V_XW0, V_XW1, V_XR = 182, 183, 184
    V_ONES = 188
    V_DIAG = 192
    V_T = 194
    V_MEAN = [206, 207]
    V_RINV = [208, 209]
    V_TL, V_TS = 210, 211
    V_RM = 212
    V_RR = 220
    V_ST = 228
    V_WX = 229
    V_WS = 230
    XLDS = 102400

    def acc(b, blk):
        return (b * 5 + blk) * 4

    def accw(blk):
        return 40 + blk * 4

    def sf(buf, hh, blk):
        return 60 + buf * 40 + (hh * 5 + blk) * 4

    ASUM = [140, 144]
    ASQ = [148, 152]

    def xf(buf, b, hh):
        return XF + buf * 16 + (b * 2 + hh) * 4

    k.e("s_lshl_b32 s69, s65, 7")
    k.e("s_lshl_b32 s72, s64, 5")
    k.e("s_add_u32 s69, s69, s72")
    k.e("v_lshrrev_b32 v5, 3, v1")
    k.e("v_and_b32 v6, 7, v1")
    k.e("v_add_u32 v7, s69, v5")
    k.e("v_mul_u32_u24 v7, 1280, v7")
    k.e("v_lshlrev_b32 v8, 4, v6")
    k.e(f"v_add_u32 v{V_XL}, v7, v8")
    k.e("v_xor_b32 v8, v6, v5")
    k.e("v_lshlrev_b32 v8, 4, v8")
    k.e("v_mul_u32_u24 v7, 1280, v5")
    k.e(f"v_add_u32 v{V_DMA}, v7, v8")
    k.e("s_lshr_b32 s75, s64, 1")
    k.e("s_and_b32 s76, s64, 1")
    k.e("s_mul_i32 s73, s75, 10240")
    k.e("s_mul_i32 s77, s76, 5120")
    k.e("s_add_u32 s73, s73, s77")
    k.e("s_and_b32 s74, s66, 7")
    k.e("s_mul_i32 s74, s74, 102400")
    k.e("s_mul_i32 s77, s76, 51200")
    k.e("s_add_u32 s74, s74, s77")
    k.e("s_lshl_b32 s77, s75, 7")
    k.e("s_add_u32 s74, s74, s77")
    for i in range(4):
        k.e(f"s_mov_b32 s{93+i}, {i*8*1280}")

    def xr(q, i):
        return v4(XP + q * 16 + i * 4) if q < 4 else a4(156 + (q - 4) * 16 + i * 4)

    def xload_ops(q):
        return [lambda i=i: k.vmem(f"buffer_load_dwordx4 {xr(q, i)}, v{V_XL}, s[{S_X}:{S_X+3}], s{93+i} offen offset:{q*128}", ("x", q)) for i in range(4)]

    def wdma_ops(Q):
        ops = []
        for i in range(5):
            def f(i=i):
                k.e(f"s_add_u32 m0, s73, {Q*20480 + i*1024}")
                k.e(f"s_add_u32 s77, s74, {Q*256 + i*10240}")
                k.vmem(f"buffer_load_dwordx4 v{V_DMA}, s[{S_W}:{S_W+3}], s77 offen lds", ("dma", Q))
            ops.append(f)
        return ops

    for op in xload_ops(0) + wdma_ops(0) + xload_ops(1) + xload_ops(2) + wdma_ops(1):
        op()
    k.e("v_and_b32 v8, 3, v5")
    k.e("v_xor_b32 v8, v8, v6")
    k.e("v_lshlrev_b32 v8, 4, v8")
    k.e("v_lshlrev_b32 v7, 7, v5")
    k.e("v_add_u32 v7, v7, v8")
    k.e("s_lshl_b32 s72, s64, 12")
    k.e(f"s_add_u32 s72, s72, {XLDS}")
    k.e(f"v_add_u32 v{V_XW0}, s72, v7")
    k.e(f"v_xor_b32 v{V_XW1}, 64, v{V_XW0}")
    k.e("v_and_b32 v5, 7, v2")
    k.e("v_xor_b32 v5, v5, v3")
    k.e("v_lshlrev_b32 v5, 4, v5")
    k.e("v_lshlrev_b32 v6, 7, v2")
    k.e(f"v_add_u32 v{V_B0}, v5, v6")
    k.e(f"v_xor_b32 v{V_B1}, 64, v{V_B0}")
    k.e(f"v_add_u32 v{V_B2}, 61440, v{V_B0}")
    k.e(f"v_add_u32 v{V_B3}, 61440, v{V_B1}")
    k.e("v_lshrrev_b32 v6, 2, v2")
    k.e("v_lshlrev_b32 v6, 3, v6")
    k.e("v_and_b32 v7, 3, v2")
    k.e("v_add_u32 v6, v6, v7")
    k.e("v_lshlrev_b32 v6, 7, v6")
    k.e("v_add_u32 v6, v6, v5")
    k.e(f"v_add_u32 v{V_XR}, s72, v6")
    k.e(f"v_xor_b32 v{V_XR+1}, 64, v{V_XR}")
    k.e(f"v_add_u32 v{V_XR+2}, 512, v{V_XR}")
    k.e(f"v_add_u32 v{V_XR+3}, 512, v{V_XR+1}")
    for i in range(4):
        k.e(f"v_mov_b32 v{V_ONES+i}, 0x3f803f80")
    k.e("v_lshrrev_b32 v6, 2, v2")
    k.e("v_lshlrev_b32 v6, 4, v6")
    k.e("v_add_u32 v6, v6, v2")
    k.e(f"v_lshlrev_b32 v{V_DIAG}, 2, v6")
    k.e("v_mov_b32 v5, 0")
    for i in range(20):
        k.e(f"v_accvgpr_write_b32 a{40+i}, v5")

    k.e("s_mul_hi_u32 s80, s2, 0xcccccccd")
    k.e("s_lshr_b32 s80, s80, 4")
    k.e("s_mul_i32 s81, s80, 20")
    k.e("s_sub_u32 s81, s2, s81")
    k.e("s_mul_hi_u32 s82, s2, 0xaaaaaaab")
    k.e("s_lshr_b32 s82, s82, 5")
    k.e("s_mul_i32 s83, s82, 48")
    k.e("s_sub_u32 s83, s2, s83")
    k.e(f"s_mul_i32 s84, s81, {32*3072}")
    k.e("s_lshl_b32 s89, s80, 8")
    k.e("s_add_u32 s84, s84, s89")
    k.e(f"s_add_u32 s85, s84, {16*3072}")
    k.e("s_mov_b32 s86, 3072")
    k.e(f"s_mul_i32 s87, s80, {8*20*1024}")
    k.e("s_lshl_b32 s89, s81, 10")
    k.e("s_add_u32 s87, s87, s89")
    k.e(f"s_add_u32 s87, s87, {L.WGF_OFF}")
    k.e(f"s_mul_i32 s89, s64, {L.WUF_OFF - L.WGF_OFF}")
    k.e("s_add_u32 s87, s87, s89")
    k.e(f"s_mov_b32 s88, {20*1024}")
    k.e(f"v_mul_u32_u24 v5, {4*3072}, v3")
    k.e("v_lshlrev_b32 v6, 4, v2")
    k.e(f"v_add_u32 v{V_TL}, v5, v6")
    k.e(f"v_lshlrev_b32 v{V_TS}, 4, v1")
    k.e("s_cmp_eq_u32 s64, 0")
    k.e(f"s_cselect_b32 s70, s{P_WG}, s{P_WU}")
    k.e(f"s_cselect_b32 s71, s{P_WG+1}, s{P_WU+1}")
    k.e("s_cmp_lt_u32 s64, 2")
    k.e("s_cbranch_scc1 k1_tparam_done")
    k.e(f"s_mov_b32 s70, s{P_WD}")
    k.e(f"s_mov_b32 s71, s{P_WD+1}")
    k.e("s_lshl_b32 s89, s83, 1")
    k.e("s_lshr_b32 s90, s89, 3")
    k.e("s_lshl_b32 s90, s90, 7")
    k.e("s_and_b32 s91, s89, 7")
    k.e("s_add_u32 s90, s90, s91")
    k.e("s_mul_i32 s84, s90, 1280")
    k.e("s_lshl_b32 s91, s82, 8")
    k.e("s_add_u32 s84, s84, s91")
    k.e("s_add_u32 s85, s84, 1280")
    k.e(f"s_mov_b32 s86, {8*1280}")
    k.e(f"s_mul_i32 s87, s82, {8*48*1024}")
    k.e("s_lshl_b32 s91, s83, 10")
    k.e("s_add_u32 s87, s87, s91")
    k.e(f"s_add_u32 s87, s87, {L.WDF_OFF}")
    k.e("s_mov_b32 s88, 16")
    k.e(f"v_mul_u32_u24 v5, {32*1280}, v3")
    k.e(f"v_add_u32 v{V_TL}, v5, v6")
    k.e("v_lshrrev_b32 v5, 1, v2")
    k.e(f"v_mul_u32_u24 v5, {48*1024}, v5")
    k.e("v_lshlrev_b32 v6, 8, v3")
    k.e("v_add_u32 v5, v5, v6")
    k.e("v_and_b32 v6, 1, v2")
    k.e("v_lshlrev_b32 v6, 7, v6")
    k.e(f"v_add_u32 v{V_TS}, v5, v6")
    k.label("k1_tparam_done")
    k.srd(S_T, 70, 71, WF_BYTES)
    k.e("s_cmp_lt_u32 s2, 240")
    k.e("s_cselect_b32 s92, 1, 0")
    k.e("s_cmp_lt_u32 s64, 3")
    k.e("s_cselect_b32 s92, s92, 0")
    k.e("s_cmp_eq_u32 s92, 0")
    k.e("s_cselect_b32 s92, 0x40000000, 0")
    k.e(f"v_add_u32 v{V_TL}, s92, v{V_TL}")
    k.e(f"v_add_u32 v{V_TS}, s92, v{V_TS}")
    k.e("s_mov_b32 s90, 0x05040100")
    k.e("s_mov_b32 s91, 0x07060302")

    def tload_ops():
        ops = []
        for i in range(8):
            def f(i=i):
                k.e(f"s_mul_i32 s89, s86, {i % 4}")
                k.e(f"s_add_u32 s89, s89, s{84 + i // 4}")
                k.vmem(f"buffer_load_dwordx4 {v4(TI + i*4)}, v{V_TL}, s[{S_T}:{S_T+3}], s89 offen", ("t",))
            ops.append(f)
        return ops

    def tfin_ops():
        ops = [lambda: k.wait_vm(lambda t: t == ("t",))]
        for u in range(8):
            for p in range(4):
                ops.append(lambda u=u, p=p: k.e(f"v_perm_b32 v{TO + u*4 + p}, v{TI + (2*p+1)*4 + u//2}, v{TI + (2*p)*4 + u//2}, s{90 + (u&1)}"))
            def st(u=u):
                k.vmem(f"buffer_store_dwordx4 {v4(TO + u*4)}, v{V_TS}, s[{S_WS}:{S_WS+3}], s87 offen", ("st",))
                k.e("s_add_u32 s87, s87, s88")
            ops.append(st)
        return ops

    def fetch_ops(q):
        ops = []
        for i in range(4):
            ops.append(lambda i=i: k.lds(f"ds_write_b128 v{V_XW0 + (i&1)}, {xr(q, i)} offset:{i*1024}", ("f", q)))
        for b in range(2):
            for hh in range(2):
                ops.append(lambda b=b, hh=hh: k.lds(f"ds_read_b128 {v4(xf(q&1,b,hh))}, v{V_XR + b*2 + hh}", ("f", q)))
        for hh in range(2):
            for blk in range(5):
                off = q * 10240 + blk * 2048
                base = V_B0 + hh
                if q >= 6:
                    off -= 61440
                    base += 2
                ops.append(lambda hh=hh, blk=blk, off=off, base=base: k.lds(f"ds_read_b128 {a4(sf(q&1,hh,blk))}, v{base} offset:{off}", ("f", q)))
        return ops

    def pre_fetch(q):
        k.wait_vm(lambda t: t == ("x", q) or (q % 2 == 0 and t == ("dma", q // 2)))
        if q % 2 == 0:
            k.e("s_barrier")

    PF = int(os.environ.get("PF", "128"))
    PFQ = int(os.environ.get("PFQ", "3"))
    pf_ops = []
    if PF:
        S_PF = 56
        k.e("s_cmp_lt_u32 s2, 128")
        k.e(f"s_cselect_b32 s70, s{P_CR}, s{P_CI}")
        k.e(f"s_cselect_b32 s71, s{P_CR+1}, s{P_CI+1}")
        k.srd(S_PF, 70, 71, C_BYTES)
        k.e("s_and_b32 s60, s2, 127")
        k.e("s_lshl_b32 s60, s60, 16")
        k.e("s_lshl_b32 s61, s64, 14")
        k.e("s_add_u32 s60, s60, s61")
        k.e(f"v_mul_u32_u24 v250, {PF}, v1")
        for i in range(16384 // (64 * PF)):
            def f(i=i):
                k.e(f"s_add_u32 s61, s60, {i*64*PF}")
                k.vmem(f"buffer_load_dword v251, v250, s[{S_PF}:{S_PF+3}], s61 offen", ("pf",))
            pf_ops.append(f)
    k.stamp()
    pre_fetch(0)
    k.stamp()
    for op in fetch_ops(0):
        op()
    for q in range(10):
        k.wait_lg_all()
        side = []
        if q + 1 < 10:
            pre_fetch(q + 1)
            side += fetch_ops(q + 1)
        if q < 3:
            side += xload_ops(2 * q + 3) + wdma_ops(q + 2) + xload_ops(2 * q + 4)
        if q == 3:
            side += xload_ops(9) + tload_ops()
        if q == PFQ:
            side += pf_ops
        if q == 8:
            side += tfin_ops()
        main = []
        M = lambda x: main.append(lambda: k.e(x))
        for hh in range(2):
            first = (q == 0 and hh == 0)
            for b in range(2):
                M(f"v_mfma_f32_16x16x32_bf16 {a4(ASUM[b])}, {v4(V_ONES)}, {v4(xf(q&1,b,hh))}, {'0' if first else a4(ASUM[b])}")
                M(f"v_mfma_f32_16x16x32_bf16 {a4(ASQ[b])}, {v4(xf(q&1,b,hh))}, {v4(xf(q&1,b,hh))}, {'0' if first else a4(ASQ[b])}")
            for blk in range(5):
                for b in range(2):
                    cin = "0" if first else a4(acc(b, blk))
                    M(f"v_mfma_f32_16x16x32_bf16 {a4(acc(b,blk))}, {v4(xf(q&1,b,hh))}, {a4(sf(q&1,hh,blk))}, {cin}")
        spread(k, main, side)
        for hh in range(2):
            lab = f"k1_ws_{q}_{hh}"
            k.e(f"s_cmp_lg_u32 s64, {(2*q+hh) % 4}")
            k.e(f"s_cbranch_scc1 {lab}")
            for blk in range(5):
                k.e(f"v_mfma_f32_16x16x32_bf16 {a4(accw(blk))}, {v4(V_ONES)}, {a4(sf(q&1,hh,blk))}, {a4(accw(blk))}")
            k.label(lab)
        if q in (1, 5):
            k.stamp()
    k.stamp()
    k.e("s_nop 7")
    k.e(f"v_lshlrev_b32 v{V_WX}, 2, v1")
    k.e(f"v_add_u32 v5, s72, v{V_WX}")
    for blk in range(5):
        k.e(f"v_accvgpr_read_b32 v{V_WS+blk}, a{accw(blk)}")
    for blk in range(5):
        k.lds(f"ds_write_b32 v5, v{V_WS+blk} offset:{blk*256}", "wx")
    for op in stats_ops(k, ASUM, ASQ, V_T, V_MEAN, V_RINV, V_DIAG):
        op()
    k.wait_lg_all()
    k.e("s_barrier")
    k.e(f"v_add_u32 v{V_WX}, {XLDS}, v{V_WX}")
    for w in range(4):
        for blk in range(5):
            k.lds(f"ds_read_b32 v{V_WS + w*5 + blk}, v{V_WX} offset:{w*4096 + blk*256}", "wx")
    for r in range(4):
        k.e(f"v_lshlrev_b32 v{6+r}, 2, v3")
        k.e(f"v_add_u32 v{6+r}, {r}, v{6+r}")
        k.e(f"v_lshlrev_b32 v{6+r}, 2, v{6+r}")
        for b in range(2):
            k.lds(f"ds_bpermute_b32 v{V_RM + b*4 + r}, v{6+r}, v{V_MEAN[b]}", "st")
            k.lds(f"ds_bpermute_b32 v{V_RR + b*4 + r}, v{6+r}, v{V_RINV[b]}", "st")
    k.e("s_cmp_lt_u32 s66, 8")
    k.e("s_cselect_b32 s78, 1.0, -1.0")
    k.e(f"v_lshlrev_b32 v{V_ST}, 4, v1")
    k.e(f"s_mul_i32 s79, s66, {5*64*1024}")
    k.e("s_lshl_b32 s77, s65, 12")
    k.e("s_add_u32 s79, s79, s77")
    k.e("s_lshl_b32 s77, s64, 10")
    k.e("s_add_u32 s79, s79, s77")
    if L.ABF_OFF:
        k.e(f"s_add_u32 s79, s79, {L.ABF_OFF}")
    k.wait_lg_all()
    for blk in range(5):
        k.e(f"v_add_f32 v{V_WS+blk}, v{V_WS+blk}, v{V_WS+5+blk}")
        k.e(f"v_add_f32 v{V_WS+10+blk}, v{V_WS+10+blk}, v{V_WS+15+blk}")
        k.e(f"v_add_f32 v{V_WS+blk}, v{V_WS+blk}, v{V_WS+10+blk}")
    for i in range(8):
        k.e(f"v_mul_f32 v{V_RR+i}, s78, v{V_RR+i}")
    EP = 16
    for blk in range(5):
        w = EP + blk * 12
        for b in range(2):
            for r in range(4):
                k.e(f"v_accvgpr_read_b32 v{w+b*4+r}, a{acc(b,blk)+r}")
        for b in range(2):
            for r in range(4):
                k.e(f"v_fma_f32 v{w+b*4+r}, -v{V_RM+b*4+r}, v{V_WS+blk}, v{w+b*4+r}")
                k.e(f"v_mul_f32 v{w+b*4+r}, v{V_RR+b*4+r}, v{w+b*4+r}")
        for p in range(4):
            k.e(f"v_cvt_pk_bf16_f32 v{w+8+p}, v{w+2*p}, v{w+2*p+1}")
        k.e(f"s_add_u32 s77, s79, {blk*64*1024}")
        k.vmem(f"buffer_store_dwordx4 {v4(w+8)}, v{V_ST}, s[{S_WS}:{S_WS+3}], s77 offen", ("st",))
    k.stamp_flush()
    k.label(f"{k.name}_end")
    k.e("s_endpgm")
    return k, dict(vgpr=256, agpr=252, lds=102400 + 16384, grid=256, block=256)


def t2_reduce(k, isk2, accf, V_LW, V_LR0, V_LR1, Q, V_RES, OB, mid=None):
    for tb in range(4):
        for blk in range(5):
            k.lds(f"ds_write_b128 v{V_LW}, {accf(blk,tb)} offset:{(tb*5+blk)*1024}", "w")
    if mid:
        mid()
    k.wait_lg_all()
    k.e("s_barrier")

    def q(src, blk):
        return Q + (src * 5 + blk) * 4

    for blk in range(5):
        for src in range(4):
            base = V_LR0 if src < 2 else V_LR1
            off = (src % 2) * 20480 + blk * 1024
            k.lds(f"ds_read_b128 {v4(q(src,blk))}, v{base} offset:{off}", ("q", blk))
    k.wait_vm(lambda t: t == ("res",))
    T = Q + 80
    for blk in range(5):
        k.wait_lg(lambda t: t == ("q", blk))
        if isk2:
            for r in range(4):
                k.e(f"v_add_f32 v{q(0,blk)+r}, v{q(0,blk)+r}, v{q(1,blk)+r}")
                k.e(f"v_add_f32 v{q(2,blk)+r}, v{q(2,blk)+r}, v{q(3,blk)+r}")
            for p in range(2):
                k.e(f"v_cvt_pk_bf16_f32 v{T+p}, v{q(0,blk)+2*p}, v{q(0,blk)+2*p+1}")
                k.e(f"v_cvt_pk_bf16_f32 v{T+2+p}, v{q(2,blk)+2*p}, v{q(2,blk)+2*p+1}")
            for p in range(2):
                k.e(f"v_lshlrev_b32 v{T+4}, 16, v{T+p}")
                k.e(f"v_and_b32 v{T+5}, 0xffff0000, v{T+p}")
                k.e(f"v_lshlrev_b32 v{T+6}, 16, v{T+2+p}")
                k.e(f"v_and_b32 v{T+7}, 0xffff0000, v{T+2+p}")
                k.e(f"v_add_f32 v{T+4}, v{T+4}, v{T+6}")
                k.e(f"v_add_f32 v{T+5}, v{T+5}, v{T+7}")
                k.e(f"v_cvt_pk_bf16_f32 v{T+8+p}, v{T+4}, v{T+5}")
        else:
            for r in range(4):
                k.e(f"v_add_f32 v{q(0,blk)+r}, v{q(0,blk)+r}, v{q(1,blk)+r}")
                k.e(f"v_add_f32 v{q(2,blk)+r}, v{q(2,blk)+r}, v{q(3,blk)+r}")
                k.e(f"v_add_f32 v{q(0,blk)+r}, v{q(0,blk)+r}, v{q(2,blk)+r}")
            for p in range(2):
                k.e(f"v_cvt_pk_bf16_f32 v{T+8+p}, v{q(0,blk)+2*p}, v{q(0,blk)+2*p+1}")
        o = OB + 2 * blk
        for p in range(2):
            rr = V_RES + 2 * blk + p
            k.e(f"v_lshlrev_b32 v{T+4}, 16, v{T+8+p}")
            k.e(f"v_and_b32 v{T+5}, 0xffff0000, v{T+8+p}")
            k.e(f"v_lshlrev_b32 v{T+6}, 16, v{rr}")
            k.e(f"v_and_b32 v{T+7}, 0xffff0000, v{rr}")
            k.e(f"v_add_f32 v{T+4}, v{T+4}, v{T+6}")
            k.e(f"v_add_f32 v{T+5}, v{T+5}, v{T+7}")
            k.e(f"v_cvt_pk_bf16_f32 v{o+p}, v{T+4}, v{T+5}")


def t2_rowmajor_off(k, V_R):
    k.e("s_lshl_b32 s75, s65, 6")
    k.e("s_lshl_b32 s76, s64, 4")
    k.e("s_add_u32 s75, s75, s76")
    k.e("v_add_u32 v5, s75, v2")
    k.e("v_mul_u32_u24 v5, 1280, v5")
    k.e("v_lshlrev_b32 v6, 3, v3")
    k.e("v_add_u32 v5, v5, v6")
    k.e("s_mul_i32 s75, s66, 160")
    k.e(f"v_add_u32 v{V_R}, s75, v5")


TK_LDS = 147456
WSX_LDS = 131072
S_WS = 48
SPIN_MAX = 1 << 16


def seam(k, name, phase, between):
    k.stamp(tag=name)
    k.wait_vm_all()
    k.stamp(tag=name)
    k.e("s_barrier")
    k.stamp(tag=name)
    k.e("s_cmp_lg_u32 s64, 0")
    k.e(f"s_cbranch_scc1 {name}_a")
    k.e("s_mov_b64 exec, 1")
    k.e("v_mov_b32 v5, 1")
    k.e("v_mov_b32 v6, 0")
    k.e("s_lshl_b32 s9, s5, 9")
    k.e(f"s_add_u32 s9, s9, {L.SYNC_OFF + 8*256 + phase*256}")
    k.e(f"buffer_atomic_add v5, v6, s[{S_WS}:{S_WS+3}], s9 offen sc0 sc1")
    k.e("s_mov_b64 exec, -1")
    k.label(f"{name}_a")
    n0 = len(k.vm)
    between()
    nb = len(k.vm) - n0
    k.stamp(tag=name)
    k.e("s_cmp_lg_u32 s64, 0")
    k.e(f"s_cbranch_scc1 {name}_b")
    k.e(f"s_waitcnt vmcnt({min(nb, 63)})")
    k.stamp(tag=name)
    k.e("s_mov_b64 exec, 1")
    k.e("v_readfirstlane_b32 s8, v5")
    k.e("s_cmp_ge_u32 s8, 15")
    k.e(f"s_cbranch_scc1 {name}_done")
    k.e("s_mov_b32 s7, 0")
    k.label(f"{name}_poll")
    k.e(f"buffer_load_dword v5, v6, s[{S_WS}:{S_WS+3}], s9 offen sc1")
    k.e("s_waitcnt vmcnt(0)")
    k.e("v_readfirstlane_b32 s8, v5")
    k.e("s_cmp_ge_u32 s8, 16")
    k.e(f"s_cbranch_scc1 {name}_done")
    k.e("s_sleep 1")
    k.e("s_add_u32 s7, s7, 1")
    k.e(f"s_cmp_lt_u32 s7, {SPIN_MAX}")
    k.e(f"s_cbranch_scc1 {name}_poll")
    k.label(f"{name}_done")
    k.e("s_mov_b64 exec, -1")
    k.label(f"{name}_b")
    k.e("s_barrier")
    k.stamp(tag=name)


def gen_f(NST=3, NSLOT=4):
    k = KB("kf_kernel")
    prologue(k, 256)
    S_B, S_R, S_O = 44, 52, 56
    k.e("s_getreg_b32 s3, hwreg(HW_REG_XCC_ID)")
    k.e("s_and_b32 s3, s3, 7")
    if os.environ.get("FAKEX"):
        k.e("s_lshr_b32 s3, s2, 6")
    k.e("s_waitcnt lgkmcnt(0)")
    k.srd(S_WS, P_WS, P_WS + 1, L.WS_USED)
    k.e("s_cmp_lg_u32 s64, 0")
    k.e("s_cbranch_scc1 kf_tk_wait")
    k.e("s_mov_b64 exec, 1")
    k.e("v_mov_b32 v6, 0")
    k.e("s_mov_b32 s7, 0")
    k.label("kf_tk_loop")
    k.e("s_add_u32 s8, s3, s7")
    k.e("s_and_b32 s8, s8, 7")
    k.e("s_lshl_b32 s9, s8, 8")
    k.e(f"s_add_u32 s9, s9, {L.SYNC_OFF}")
    k.e("v_mov_b32 v5, 1")
    k.e(f"buffer_atomic_add v5, v6, s[{S_WS}:{S_WS+3}], s9 offen sc0 sc1")
    k.e("s_waitcnt vmcnt(0)")
    k.e("v_readfirstlane_b32 s9, v5")
    k.e("s_cmp_lt_u32 s9, 32")
    k.e("s_cbranch_scc1 kf_tk_done")
    k.e("s_add_u32 s7, s7, 1")
    k.e("s_cmp_lt_u32 s7, 8")
    k.e("s_cbranch_scc1 kf_tk_loop")
    k.e("s_mov_b32 s8, 8")
    k.e("s_mov_b32 s9, 0")
    k.label("kf_tk_done")
    k.e("s_lshl_b32 s8, s8, 5")
    k.e("s_add_u32 s8, s8, s9")
    k.e("v_mov_b32 v5, s8")
    k.e(f"v_mov_b32 v6, {TK_LDS}")
    k.e("ds_write_b32 v6, v5")
    k.e("s_waitcnt lgkmcnt(0)")
    k.e("s_mov_b64 exec, -1")
    k.label("kf_tk_wait")

    k.e("s_cmp_lt_u32 s64, 2")
    k.e(f"s_cselect_b32 s70, s{P_CR}, s{P_CI}")
    k.e(f"s_cselect_b32 s71, s{P_CR+1}, s{P_CI+1}")
    k.srd(S_B, 70, 71, C_BYTES)
    k.srd(S_R, P_X, P_X + 1, X_BYTES)
    k.srd(S_O, P_OUT, P_OUT + 1, X_BYTES)
    V_A = 8
    V_DMA = 13
    V_BR = 14
    V_R, V_H = 16, 17
    V_RES = 18
    V_LW, V_LR0, V_LR1 = 28, 29, 30
    STG = 32
    BF = STG + NST * 40
    assert BF + 64 <= 246
    V_HK = 246

    def fa(s, hh, blk):
        return STG + (s % NST) * 40 + (hh * 5 + blk) * 4

    def fb(s, hh, tb):
        return BF + (s & 1) * 32 + (hh * 4 + tb) * 4

    def acc(blk, tb):
        return (blk * 4 + tb) * 4

    k.e(f"v_lshlrev_b32 v{V_H}, 4, v1")
    k.e("v_lshrrev_b32 v5, 3, v1")
    k.e("v_and_b32 v6, 7, v1")
    k.e("v_xor_b32 v6, v6, v5")
    k.e("v_lshlrev_b32 v6, 4, v6")
    k.e("v_lshlrev_b32 v5, 12, v5")
    k.e(f"v_add_u32 v{V_DMA}, v5, v6")
    k.e(f"s_mul_i32 s73, s64, {NSLOT*8192}")
    k.e("v_and_b32 v5, 7, v2")
    k.e("v_xor_b32 v5, v5, v3")
    k.e("v_lshlrev_b32 v5, 4, v5")
    k.e("v_lshlrev_b32 v6, 7, v2")
    k.e("v_add_u32 v5, v5, v6")
    k.e(f"v_add_u32 v{V_BR}, s73, v5")
    k.e(f"v_xor_b32 v{V_BR+1}, 64, v{V_BR}")
    k.e("s_mul_i32 s75, s64, 20480")
    k.e(f"v_add_u32 v{V_LW}, s75, v{V_H}")
    k.e("s_mul_i32 s75, s64, 5120")
    k.e(f"v_add_u32 v{V_LR0}, s75, v{V_H}")
    k.e(f"v_add_u32 v{V_LR1}, 40960, v{V_LR0}")
    k.e(f"v_mov_b32 v6, {TK_LDS}")
    k.e("s_barrier")
    k.e("ds_read_b32 v5, v6")
    k.e("s_waitcnt lgkmcnt(0)")
    k.e("v_readfirstlane_b32 s4, v5")
    k.e("s_cmp_ge_u32 s4, 256")
    k.e(f"s_cbranch_scc1 {k.name}_end")
    k.e("s_lshr_b32 s5, s4, 4")
    k.e("s_and_b32 s6, s4, 15")
    k.e("s_lshr_b32 s65, s4, 3")
    k.e("s_and_b32 s66, s4, 7")
    k.stamp()
    k.e("s_and_b32 s72, s64, 1")
    k.e("s_lshl_b32 s74, s65, 18")
    k.e("s_lshl_b32 s75, s72, 11")
    k.e("s_add_u32 s74, s74, s75")
    k.e("s_lshl_b32 s75, s72, 15")
    k.e("s_lshr_b32 s72, s64, 1")
    k.e("s_mul_i32 s72, s72, 40")
    k.e("s_mul_i32 s76, s66, 5")
    k.e("s_add_u32 s72, s72, s76")
    k.e("s_lshl_b32 s72, s72, 16")
    k.e("s_add_u32 s72, s72, s75")
    if L.ABF_OFF:
        k.e(f"s_add_u32 s72, s72, {L.ABF_OFF}")
    k.e(f"v_add_u32 v{V_A}, s72, v{V_H}")
    for blk in range(1, 5):
        k.e(f"v_add_u32 v{V_A+blk}, {blk*65536}, v{V_A}")

    def a_ops(s):
        ops = []
        for hh in range(2):
            for blk in range(5):
                def f(hh=hh, blk=blk):
                    if hh == 0 and blk == 0:
                        k.e(f"s_mov_b32 s80, {s*2048}")
                    k.vmem(f"buffer_load_dwordx4 {v4(fa(s,hh,blk))}, v{V_A+blk}, s[{S_WS}:{S_WS+3}], s80 offen offset:{hh*1024}", ("a", s))
                ops.append(f)
        return ops

    def c_ops(s):
        ops = []
        for i in range(8):
            def f(i=i):
                k.e(f"s_add_u32 m0, s73, {(s % NSLOT)*8192 + i*1024}")
                k.e(f"s_add_u32 s77, s74, {i*8*4096 + s*128}")
                k.vmem(f"buffer_load_dwordx4 v{V_DMA}, s[{S_B}:{S_B+3}], s77 offen lds", ("c", s))
            ops.append(f)
        return ops

    def b_ops(s):
        ops = []
        for hh in range(2):
            for tb in range(4):
                ops.append(lambda hh=hh, tb=tb: k.lds(f"ds_read_b128 {v4(fb(s,hh,tb))}, v{V_BR+hh} offset:{(s % NSLOT)*8192 + tb*2048}", ("b", s)))
        return ops

    NS = 16
    for s in range(NSLOT):
        for op in c_ops(s):
            op()
        if s < NST - 1:
            for op in a_ops(s):
                op()
    t2_rowmajor_off(k, V_R)
    for blk in range(5):
        k.vmem(f"buffer_load_dwordx2 {v2(V_RES+2*blk)}, v{V_R}, s[{S_R}:{S_R+3}], 0 offen offset:{blk*32}", ("res",))
    k.e("s_lshl_b32 s75, s65, 2")
    k.e("s_add_u32 s75, s75, s64")
    k.e(f"s_mul_i32 s75, s75, {20*1024}")
    k.e(f"s_add_u32 s75, s75, {L.H_OFF}")
    k.e("s_mul_i32 s76, s66, 5")
    k.e("s_lshr_b32 s76, s76, 1")
    k.e("s_lshl_b32 s76, s76, 10")
    k.e("s_add_u32 s84, s75, s76")
    k.e("s_lshr_b32 s75, s64, 1")
    k.e("s_and_b32 s76, s64, 1")
    k.e(f"s_mul_i32 s11, s75, {96*20480}")
    k.e(f"s_add_u32 s11, s11, {L.WGF_OFF}")
    k.e(f"s_mul_i32 s77, s6, {6*20480}")
    k.e("s_add_u32 s11, s11, s77")
    k.e(f"s_mul_i32 s77, s76, 20480")
    k.e("s_add_u32 s11, s11, s77")
    k.e("s_lshl_b32 s10, s64, 12")
    k.e(f"s_mul_i32 s13, s64, {12*1024}")
    k.e(f"s_mul_i32 s77, s66, {5*48*1024}")
    k.e("s_add_u32 s13, s13, s77")
    k.e(f"s_add_u32 s13, s13, {L.WDF_OFF}")

    CH = 16384

    def slot3(ci):
        return (ci + 5) % 8

    def dma_ops(ci, vreg):
        P, q = divmod(ci, 5)
        ops = []
        for jj in range(4):
            def f(jj=jj):
                k.e(f"s_add_u32 m0, s10, {slot3(ci)*CH + jj*1024}")
                k.e(f"s_add_u32 s12, s11, {2*P*20480 + (4*q+jj)*1024}")
                k.vmem(f"buffer_load_dwordx4 v{vreg}, s[{S_WS}:{S_WS+3}], s12 offen lds", ("dma", ci))
            ops.append(f)
        return ops

    k.wait_vm(lambda t: t == ("c", 0))
    k.stamp()
    for op in b_ops(0):
        op()
    for s in range(NS):
        k.wait_lg_all()
        ex = []
        if s + 1 < NS:
            k.wait_vm(lambda t: t == ("c", s + 1) or t == ("a", s))
            ex += b_ops(s + 1)
        else:
            k.wait_vm(lambda t: t == ("a", s))
        if s + NSLOT < NS:
            ex += c_ops(s + NSLOT)
        if s + NST - 1 < NS:
            ex += a_ops(s + NST - 1)
        main = []
        for hh in range(2):
            for blk in range(5):
                for tb in range(4):
                    cin = "0" if (s == 0 and hh == 0) else a4(acc(blk, tb))
                    main.append(lambda hh=hh, blk=blk, tb=tb, cin=cin: k.e(f"v_mfma_f32_16x16x32_bf16 {a4(acc(blk,tb))}, {v4(fa(s,hh,blk))}, {v4(fb(s,hh,tb))}, {cin}"))
        interleave(k, main, ex)
        if s == 7:
            k.stamp()
    k.stamp()
    k.e("s_nop 7")
    k.e("s_nop 7")
    k.e("s_barrier")

    def mid2():
        for ci in range(3):
            for op in dma_ops(ci, V_H):
                op()

    t2_reduce(k, True, lambda blk, tb: a4(acc(blk, tb)), V_LW, V_LR0, V_LR1, STG, V_RES, V_HK, mid2)
    k.e("s_bitcmp1_b32 s66, 0")
    k.e("s_cbranch_scc1 kf_h_odd")
    k.e(f"buffer_store_dwordx4 {v4(V_HK)}, v{V_H}, s[{S_WS}:{S_WS+3}], s84 offen sc1")
    k.e(f"buffer_store_dwordx4 {v4(V_HK+4)}, v{V_H}, s[{S_WS}:{S_WS+3}], s84 offen offset:1024 sc1")
    k.e(f"buffer_store_dwordx2 {v2(V_HK+8)}, v{V_H}, s[{S_WS}:{S_WS+3}], s84 offen offset:2048 sc1")
    k.e("s_branch kf_h_done")
    k.label("kf_h_odd")
    k.e(f"buffer_store_dwordx2 {v2(V_HK)}, v{V_H}, s[{S_WS}:{S_WS+3}], s84 offen offset:8 sc1")
    k.e(f"buffer_store_dwordx4 {v4(V_HK+2)}, v{V_H}, s[{S_WS}:{S_WS+3}], s84 offen offset:1024 sc1")
    k.e(f"buffer_store_dwordx4 {v4(V_HK+6)}, v{V_H}, s[{S_WS}:{S_WS+3}], s84 offen offset:2048 sc1")
    k.label("kf_h_done")
    k.stamp()

    def panel(b, j):
        return (b * 20 + j) * 4

    ASUM = [160, 164]
    ASQ = [168, 172]

    def sf(buf, n):
        return 176 + buf * 16 + n * 4

    def acc3(P, n, b):
        return 16 + (P & 1) * 32 + (n * 2 + b) * 4

    W0, W1, W2, W3 = 80, 96, 112, 200
    V_P0, V_P1, V_L16 = 128, 129, 130
    V_WX = 131
    V_B = 132
    V_ONES = 136
    V_DIAG = 140
    V_ST = 141
    V_WR = 142
    V_MEAN = [144, 145]
    V_RINV = [146, 147]
    V_C = 148
    V_ONE = 156
    V_T = 160
    V_X = 184

    def between1():
        for ci in range(3, 8):
            for op in dma_ops(ci, V_H):
                op()
        k.e(f"v_lshlrev_b32 v{V_L16}, 4, v1")
        k.e("s_lshl_b32 s69, s5, 3")
        k.e("s_lshl_b32 s72, s64, 1")
        k.e("s_add_u32 s69, s69, s72")
        k.e(f"s_mul_i32 s72, s69, {20*1024}")
        k.e(f"s_add_u32 s72, s72, {L.H_OFF}")
        k.e(f"v_add_u32 v{V_P0}, s72, v{V_L16}")
        k.e(f"v_add_u32 v{V_P1}, {20*1024}, v{V_P0}")
        k.e(f"v_mov_b32 v{V_B}, v{V_L16}")
        k.e(f"v_add_u32 v{V_B+1}, 65536, v{V_L16}")
        for i in range(4):
            k.e(f"v_mov_b32 v{V_ONES+i}, 0x3f803f80")
        k.e(f"v_mov_b32 v{V_ONE}, 1.0")
        k.e(f"v_mov_b32 v{V_ONE+1}, 1.0")
        k.e(f"v_lshrrev_b32 v{V_T}, 2, v2")
        k.e(f"v_lshlrev_b32 v{V_T}, 4, v{V_T}")
        k.e(f"v_add_u32 v{V_T}, v{V_T}, v2")
        k.e(f"v_lshlrev_b32 v{V_DIAG}, 2, v{V_T}")
        k.e(f"s_mul_i32 s77, s69, {48*1024}")
        k.e(f"s_mul_i32 s78, s6, {3*1024}")
        k.e("s_add_u32 s77, s77, s78")
        k.e(f"s_add_u32 s77, s77, {L.ACT_OFF}")
        k.e(f"v_add_u32 v{V_ST}, s77, v{V_L16}")
        k.e(f"s_mov_b32 s82, {48*1024}")
        k.e(f"v_add_u32 v{V_WR}, {WSX_LDS}, v{V_L16}")
        k.e(f"v_add_u32 v{V_WX}, s10, v{V_WR}")
        import math
        c0 = -2.0 * math.log2(math.e) * math.sqrt(2.0 / math.pi)
        c1 = c0 * 0.044715
        k.e(f"s_mov_b32 s83, {f32hex(c0)}")
        k.e(f"s_mov_b32 s84, {f32hex(c1)}")

    seam(k, "kf_s1", 0, between1)
    k.stamp()

    def panel_ops(q):
        ops = []
        for jj in range(4):
            for b in range(2):
                def f(jj=jj, b=b):
                    if jj == 0 and b == 0:
                        k.e(f"s_mov_b32 s80, {q*4096}")
                    k.vmem(f"buffer_load_dwordx4 {a4(panel(b,4*q+jj))}, v{V_P0+b}, s[{S_WS}:{S_WS+3}], s80 offen offset:{jj*1024} sc1", ("panel", q))
                ops.append(f)
        return ops

    def dsread_ops(st):
        P, j = divmod(st, 20)
        ci = P * 5 + j // 4
        slot = slot3(ci)
        ops = []
        for n in range(4):
            off = (slot % 4) * CH + (n * 4 + j % 4) * 1024
            ops.append(lambda n=n, off=off: k.lds(f"ds_read_b128 {a4(sf(st&1, n))}, v{V_B + slot//4} offset:{off}", ("sf", st)))
        return ops

    def const_ops():
        ops = []
        E = lambda x: ops.append(lambda: k.e(x))
        for b in range(2):
            c = V_C + 4 * b
            E(f"v_sub_f32 v{c}, 0, v{V_MEAN[b]}")
            E(f"v_mul_f32 v{c+1}, s83, v{V_RINV[b]}")
            E(f"v_mul_f32 v{c+3}, v{V_RINV[b]}, v{V_RINV[b]}")
            E(f"v_mul_f32 v{c+2}, v{c+3}, v{V_RINV[b]}")
            E(f"v_mul_f32 v{c+2}, s84, v{c+2}")
        return ops

    def wx_write_ops():
        return [lambda n=n: k.lds(f"ds_write_b128 v{V_WX}, {v4(V_X + 4*n)} offset:{n*1024}", "wxw") for n in range(4)]

    def wx_read_ops():
        ops = []
        for u, dst in enumerate((W0, W1, W2, W3)):
            for n in range(4):
                ops.append(lambda u=u, n=n, dst=dst: k.lds(f"ds_read_b128 {v4(dst + 4*n)}, v{V_WR} offset:{u*4096 + n*1024}", "wxr"))
        return ops

    def wx_add_ops():
        ops = [lambda: k.wait_lg(lambda t: t == "wxr")]
        E = lambda x: ops.append(lambda: k.e(x))
        for i in range(16):
            E(f"v_add_f32 v{W0+i}, v{W0+i}, v{W1+i}")
            E(f"v_add_f32 v{W2+i}, v{W2+i}, v{W3+i}")
            E(f"v_add_f32 v{W0+i}, v{W0+i}, v{W2+i}")
        return ops

    def epi_ops(P, packed):
        ops = []
        E = lambda x: ops.append(lambda: k.e(x))
        for b in range(2):
            c = V_C + 4 * b
            Z = V_T + b * 12
            O = Z + 8
            G = [acc3(P, i // 4, b) + i % 4 for i in range(8)]
            U = [acc3(P, 2 + i // 4, b) + i % 4 for i in range(8)]
            WG = [W0 + i for i in range(8)]
            WU = [W0 + 8 + i for i in range(8)]
            if not packed:
                for i in range(8):
                    E(f"v_fma_f32 v{G[i]}, v{WG[i]}, v{c}, v{G[i]}")
                    E(f"v_fma_f32 v{U[i]}, v{WU[i]}, v{c}, v{U[i]}")
                for i in range(8):
                    E(f"v_mul_f32 v{Z+i}, v{G[i]}, v{G[i]}")
                    E(f"v_mul_f32 v{U[i]}, v{U[i]}, v{G[i]}")
                for i in range(8):
                    E(f"v_fma_f32 v{Z+i}, v{Z+i}, v{c+2}, v{c+1}")
                    E(f"v_mul_f32 v{U[i]}, v{U[i]}, v{c+3}")
                for i in range(8):
                    E(f"v_mul_f32 v{Z+i}, v{Z+i}, v{G[i]}")
                for i in range(8):
                    E(f"v_exp_f32 v{Z+i}, v{Z+i}")
                for i in range(8):
                    E(f"v_add_f32 v{Z+i}, 1.0, v{Z+i}")
                for i in range(8):
                    E(f"v_rcp_f32 v{Z+i}, v{Z+i}")
                for i in range(8):
                    E(f"v_mul_f32 v{U[i]}, v{U[i]}, v{Z+i}")
            else:
                for i in range(0, 8, 2):
                    E(f"v_pk_fma_f32 {v2(G[i])}, {v2(WG[i])}, {v2(c)}, {v2(G[i])} op_sel_hi:[1,0,1]")
                    E(f"v_pk_fma_f32 {v2(U[i])}, {v2(WU[i])}, {v2(c)}, {v2(U[i])} op_sel_hi:[1,0,1]")
                for i in range(0, 8, 2):
                    E(f"v_pk_mul_f32 {v2(Z+i)}, {v2(G[i])}, {v2(G[i])}")
                    E(f"v_pk_mul_f32 {v2(U[i])}, {v2(U[i])}, {v2(G[i])}")
                for i in range(0, 8, 2):
                    E(f"v_pk_fma_f32 {v2(Z+i)}, {v2(Z+i)}, {v2(c+2)}, {v2(c)} op_sel:[0,0,1] op_sel_hi:[1,0,1]")
                    E(f"v_pk_mul_f32 {v2(U[i])}, {v2(U[i])}, {v2(c+2)} op_sel:[0,1] op_sel_hi:[1,1]")
                for i in range(0, 8, 2):
                    E(f"v_pk_mul_f32 {v2(Z+i)}, {v2(Z+i)}, {v2(G[i])}")
                for i in range(8):
                    E(f"v_exp_f32 v{Z+i}, v{Z+i}")
                for i in range(0, 8, 2):
                    E(f"v_pk_add_f32 {v2(Z+i)}, {v2(Z+i)}, {v2(V_ONE)}")
                for i in range(8):
                    E(f"v_rcp_f32 v{Z+i}, v{Z+i}")
                for i in range(0, 8, 2):
                    E(f"v_pk_mul_f32 {v2(U[i])}, {v2(U[i])}, {v2(Z+i)}")
            for p in range(4):
                E(f"v_cvt_pk_bf16_f32 v{O+p}, v{U[2*p]}, v{U[2*p+1]}")
            sof = "0" if b == 0 else "s82"
            ops.append(lambda O=O, sof=sof: k.vmem(f"buffer_store_dwordx4 {v4(O)}, v{V_ST}, s[{S_WS}:{S_WS+3}], {sof} offen offset:{P*1024} sc1", ("st",)))
        return ops

    wd_slots = [208 + 4 * i for i in range(12)] + [160 + 4 * i for i in range(4)]
    for j in range(20):
        wd_slots += [panel(0, j), panel(1, j)]
    wd_slots += [176 + 4 * i for i in range(4)]
    assert len(wd_slots) == 60

    def wd(ks, blk):
        return wd_slots[ks * 5 + blk]

    def wd_op(idx):
        ks, blk = divmod(idx, 5)
        def f():
            k.e(f"s_add_u32 s12, s13, {(blk*48 + ks)*1024}")
            k.vmem(f"buffer_load_dwordx4 {a4(wd_slots[idx])}, v{V_L16}, s[{S_WS}:{S_WS+3}], s12 offen", ("wd",))
        return f

    for q in range(2):
        for op in panel_ops(q):
            op()
    k.wait_vm(lambda t: t == ("panel", 0))
    for op in dsread_ops(0):
        op()
    for P in range(3):
        per = [[] for _ in range(20)]

        def dist(ops, j0, j1):
            for i, op in enumerate(ops):
                per[j0 + i * (j1 - j0 + 1) // len(ops)].append(op)

        if P == 1:
            dist(stats_ops(k, ASUM, ASQ, V_T, V_MEAN, V_RINV, V_DIAG) + const_ops(), 1, 4)
        if P >= 1:
            dist(wx_read_ops(), 4, 5)
            dist(wx_add_ops() + epi_ops(P - 1, False), 6, 18)
        if P == 2:
            dist([wd_op(i) for i in range(16)], 0, 3)
        pend_vm = []
        if P == 0:
            pend_vm = panel_ops(2) + panel_ops(3) + panel_ops(4)
        for j in range(20):
            st = P * 20 + j
            ci = P * 5 + j // 4
            k.wait_lg(lambda t: t == ("sf", st))
            side = []
            if j % 4 == 3 and st + 1 < 60:
                k.wait_vm(lambda t: t == ("dma", ci + 1) or t == ("panel", ci + 1))
                if P >= 1 and j == 3:
                    k.wait_lg(lambda t: t == "wxw")
                k.e("s_barrier")
                if ci + 8 < 15:
                    pend_vm += dma_ops(ci + 8, V_L16)
            if st + 1 < 60:
                side += dsread_ops(st + 1)
            ntake = min(len(pend_vm), 8) if P == 0 else ((len(pend_vm) + 2) // 3 if j % 4 != 2 else len(pend_vm))
            side += pend_vm[:ntake]
            pend_vm = pend_vm[ntake:]
            side += per[j]
            if P == 2 and j >= 1:
                side += [wd_op(16 + 2 * (j - 1)), wd_op(17 + 2 * (j - 1))]
            main = []
            M = lambda x: main.append(lambda: k.e(x))
            for n in range(4):
                for b in range(2):
                    cin = "0" if j == 0 else v4(acc3(P, n, b))
                    M(f"v_mfma_f32_16x16x32_bf16 {v4(acc3(P,n,b))}, {a4(sf(st&1,n))}, {a4(panel(b,j))}, {cin}")
            if P == 0:
                for b in range(2):
                    M(f"v_mfma_f32_16x16x32_bf16 {a4(ASUM[b])}, {v4(V_ONES)}, {a4(panel(b,j))}, {'0' if j == 0 else a4(ASUM[b])}")
                    M(f"v_mfma_f32_16x16x32_bf16 {a4(ASQ[b])}, {a4(panel(b,j))}, {a4(panel(b,j))}, {'0' if j == 0 else a4(ASQ[b])}")
            spread(k, main, side)
            if j % 3 == 0:
                k.stamp(tag=f"p{P}")
            if P >= 1 and j == 0:
                for op in wx_write_ops():
                    op()
            lab = f"kf_ws_{st}"
            k.e(f"s_cmp_lg_u32 s64, {j % 4}")
            k.e(f"s_cbranch_scc1 {lab}")
            for n in range(4):
                k.e(f"v_mfma_f32_16x16x32_bf16 {v4(V_X+4*n)}, {a4(sf(st&1,n))}, {v4(V_ONES)}, {'0' if j < 4 else v4(V_X+4*n)}")
            k.label(lab)
        assert not pend_vm
        k.stamp()
    for i in range(54, 60):
        wd_op(i)()
    k.e("s_nop 7")
    k.e("s_nop 7")
    for op in wx_write_ops():
        op()
    k.wait_lg_all()
    k.e("s_barrier")
    for op in wx_read_ops() + wx_add_ops() + epi_ops(2, True):
        op()
    k.stamp()

    V_B4 = 8
    V_R4 = 12
    V_LW4, V_LR04, V_LR14 = 13, 14, 15
    ACC4 = 16
    STG4 = 96
    NST4 = 4

    def acc4(blk, tb):
        return ACC4 + (blk * 4 + tb) * 4

    def fb4(s, hh, tb):
        return STG4 + (s % NST4) * 32 + (hh * 4 + tb) * 4

    def between2():
        k.e(f"s_mul_i32 s72, s64, {12*1024}")
        k.e(f"s_mul_i32 s74, s65, {4*48*1024}")
        k.e("s_add_u32 s74, s74, s72")
        k.e(f"s_add_u32 s74, s74, {L.ACT_OFF}")
        k.e(f"v_add_u32 v{V_B4}, s74, v{V_L16}")
        for tb in range(1, 4):
            k.e(f"v_add_u32 v{V_B4+tb}, {tb*48*1024}, v{V_B4}")
        k.e("s_lshl_b32 s75, s65, 6")
        k.e("s_lshl_b32 s76, s64, 4")
        k.e("s_add_u32 s75, s75, s76")
        k.e(f"v_add_u32 v{V_T}, s75, v2")
        k.e(f"v_mul_u32_u24 v{V_T}, 1280, v{V_T}")
        k.e(f"v_lshlrev_b32 v{V_T+1}, 3, v3")
        k.e(f"v_add_u32 v{V_T}, v{V_T}, v{V_T+1}")
        k.e("s_mul_i32 s75, s66, 160")
        k.e(f"v_add_u32 v{V_R4}, s75, v{V_T}")
        k.e("s_mul_i32 s75, s64, 20480")
        k.e(f"v_add_u32 v{V_LW4}, s75, v{V_L16}")
        k.e("s_mul_i32 s75, s64, 5120")
        k.e(f"v_add_u32 v{V_LR04}, s75, v{V_L16}")
        k.e(f"v_add_u32 v{V_LR14}, 40960, v{V_LR04}")

    seam(k, "kf_s2", 1, between2)
    k.stamp()

    def ld_ops(s):
        ops = []
        for hh in range(2):
            for tb in range(4):
                def f(hh=hh, tb=tb):
                    if hh == 0 and tb == 0:
                        k.e(f"s_mov_b32 s80, {s*2048}")
                    k.vmem(f"buffer_load_dwordx4 {v4(fb4(s,hh,tb))}, v{V_B4+tb}, s[{S_WS}:{S_WS+3}], s80 offen offset:{hh*1024} sc1", ("ld", s, hh))
                ops.append(f)
        return ops

    NS4 = 6
    for s in range(NST4 - 1):
        for op in ld_ops(s):
            op()
    for s in range(NS4):
        ex = ld_ops(s + NST4 - 1) if s + NST4 - 1 < NS4 else []
        for hh in range(2):
            k.wait_vm(lambda t: t == ("ld", s, hh))
            main = []
            for blk in range(5):
                for tb in range(4):
                    cin = "0" if (s == 0 and hh == 0) else v4(acc4(blk, tb))
                    main.append(lambda hh=hh, blk=blk, tb=tb, cin=cin: k.e(f"v_mfma_f32_16x16x32_bf16 {v4(acc4(blk,tb))}, {a4(wd(2*s+hh,blk))}, {v4(fb4(s,hh,tb))}, {cin}"))
            interleave(k, main, ex[hh * 4:(hh + 1) * 4], every=2)
    k.e("s_nop 7")
    k.e("s_nop 7")
    k.stamp()
    OB4 = 200
    t2_reduce(k, False, lambda blk, tb: v4(acc4(blk, tb)), V_LW4, V_LR04, V_LR14, STG4, V_HK, OB4)
    for blk in range(5):
        k.vmem(f"buffer_store_dwordx2 {v2(OB4+2*blk)}, v{V_R4}, s[{S_O}:{S_O+3}], 0 offen offset:{blk*32}", ("st",))
    k.stamp_flush()
    k.label(f"{k.name}_end")
    k.e("s_endpgm")
    return k, dict(vgpr=256, agpr=256, lds=TK_LDS + 256, grid=256, block=256)


def main():
    ks = [gen_k1(), gen_f()]
    out = []
    hdr = open(f"cdna_kernels/{NAME}.s.ref").read().splitlines()
    for line in hdr:
        if line.startswith(";") and "@launch" not in line:
            out.append(line)
    for k, m in ks:
        out.append(f"; @launch kernel={k.name} grid=({m['grid']},1,1) block=({m['block']},1,1) lds={m['lds']}")
    out.append('.amdgcn_target "amdgcn-amd-amdhsa--gfx950"')
    out.append(".text")
    for k, m in ks:
        out.append(f".globl {k.name}")
        out.append(".p2align 8")
        out.append(f".type {k.name},@function")
        out.append(f"{k.name}:")
        out.append(k.text())
    out.append('.section .rodata,"a"')
    for k, m in ks:
        out.append(".p2align 6")
        out.append(f".amdhsa_kernel {k.name}")
        out.append(f"  .amdhsa_next_free_vgpr {m['vgpr'] + m['agpr']}")
        out.append("  .amdhsa_next_free_sgpr 102")
        out.append(f"  .amdhsa_accum_offset {m['vgpr']}")
        out.append("  .amdhsa_group_segment_fixed_size 0")
        out.append("  .amdhsa_kernarg_size 96")
        out.append("  .amdhsa_user_sgpr_count 2")
        out.append("  .amdhsa_user_sgpr_kernarg_segment_ptr 1")
        out.append("  .amdhsa_system_sgpr_workgroup_id_x 1")
        out.append(".end_amdhsa_kernel")
    path = sys.argv[1] if len(sys.argv) > 1 else f"cdna_kernels/{NAME}.s"
    open(path, "w").write("\n".join(out) + "\n")
    print("wrote", path, sum(len(k.L) for k, _ in ks), "lines")


main()
```

```python
import struct, sys
import layout as L

import os
STAMP = int(os.environ.get("STAMP", "0"))
STAMP_WG = int(os.environ.get("STAMP_WG", "0"))
STAMP_V = 4
STSET = set(x for x in os.environ.get("STSET", "").split(",") if x)
STONLY = int(os.environ.get("STONLY", "1"))
NAME = "sequential_preLN__spectral_fnet__geglu_ffn__prompt"


def f32hex(x):
    return "0x%08x" % struct.unpack("<I", struct.pack("<f", x))[0]


class KB:
    def __init__(self, name):
        self.name = name
        self.L = []
        self.vm = []
        self.lg = []
        self.nst = 0

    def e(self, s):
        self.L.append("    " + s)

    def c(self, s):
        self.L.append("    ; " + s)

    def label(self, s):
        self.L.append(s + ":")

    def vmem(self, s, tag=None):
        self.e(s)
        self.vm.append(tag)

    def lds(self, s, tag=None):
        self.e(s)
        self.lg.append(tag)

    def wait_vm(self, pred):
        idx = max([i for i, t in enumerate(self.vm) if pred(t)], default=-1)
        if idx < 0:
            return
        n = len(self.vm) - 1 - idx
        self.e(f"s_waitcnt vmcnt({min(n, 63)})")
        self.vm = self.vm[idx + 1:]

    def wait_vm_all(self):
        self.e("s_waitcnt vmcnt(0)")
        self.vm = []

    def wait_lg(self, pred):
        idx = max([i for i, t in enumerate(self.lg) if pred(t)], default=-1)
        if idx < 0:
            return
        n = len(self.lg) - 1 - idx
        self.e(f"s_waitcnt lgkmcnt({min(n, 15)})")
        self.lg = self.lg[idx + 1:]

    def wait_lg_all(self):
        self.e("s_waitcnt lgkmcnt(0)")
        self.lg = []

    def srd(self, d, lo, hi, nbytes):
        self.e(f"s_mov_b32 s{d}, s{lo}")
        self.e(f"s_and_b32 s{d+1}, s{hi}, 0xffff")
        self.e(f"s_mov_b32 s{d+2}, {nbytes}")
        self.e(f"s_mov_b32 s{d+3}, 0x00020000")

    def stamp(self, last=False, tag=None):
        if not STAMP:
            return
        if tag is not None and tag not in STSET:
            return
        if tag is None and STSET and self.nst > 0 and not last and STONLY:
            return
        i = self.nst
        self.nst += 1
        self.e("s_memtime s[98:99]")
        self.e("s_waitcnt lgkmcnt(0)")
        self.lg = []
        self.e(f"v_writelane_b32 v{STAMP_V}, s98, {i}")
        if i == 0 or last:
            self.e("s_memrealtime s[98:99]")
            self.e("s_waitcnt lgkmcnt(0)")
            self.e(f"v_writelane_b32 v{STAMP_V}, s98, {15 if last else 14}")

    def stamp_flush(self):
        if not STAMP:
            return
        self.stamp(True)
        lab = f"{self.name}_nodbg"
        self.e(f"s_cmp_lg_u32 s2, {STAMP_WG}")
        self.e(f"s_cbranch_scc1 {lab}")
        self.srd(96, P_DBG, P_DBG + 1, 256)
        self.e("v_lshlrev_b32 v5, 2, v1")
        self.e("s_lshl_b32 s95, s64, 6")
        self.e("v_add_u32 v5, s95, v5")
        self.e("v_mov_b32 v6, 0x10000")
        self.e("v_cmp_gt_u32 vcc, 16, v1")
        self.e("s_nop 1")
        self.e("v_cndmask_b32 v5, v6, v5, vcc")
        self.e(f"buffer_store_dword v{STAMP_V}, v5, s[96:99], 0 offen")
        self.label(lab)

    def text(self):
        return "\n".join(self.L)


def v4(b):
    return f"v[{b}:{b+3}]"


def a4(b):
    return f"a[{b}:{b+3}]"


def v2(b):
    return f"v[{b}:{b+1}]"


P_X, P_CR, P_CI, P_WR, P_WI, P_BX, P_WG, P_WU = 16, 18, 20, 22, 24, 26, 28, 30
P_WD, P_OUT, P_DBG, P_WS = 32, 34, 36, 38
X_BYTES = 2048 * 640 * 2
C_BYTES = 2048 * 2048 * 2
WH_BYTES = 640 * 640 * 2
WF_BYTES = 640 * 1536 * 2


def prologue(k, nwg):
    k.e(f"s_cmp_ge_u32 s2, {nwg}")
    k.e(f"s_cbranch_scc1 {k.name}_end")
    if LEAK:
        k.e("s_memrealtime s[100:101]")
    k.e("s_load_dwordx16 s[16:31], s[0:1], 0")
    k.e("s_load_dwordx8 s[32:39], s[0:1], 64")
    k.e("v_and_b32 v1, 63, v0")
    k.e("v_lshrrev_b32 v4, 6, v0")
    k.e("v_and_b32 v2, 15, v1")
    k.e("v_lshrrev_b32 v3, 4, v1")
    k.e("v_readfirstlane_b32 s64, v4")
    k.e("s_nop 1")
    k.stamp()


LEAK = os.environ.get("LEAK", "")
K1SC = os.environ.get("K1SC", "")
TS_OFF = L.SYNC_OFF + 16384


def leak(k, name):
    if LEAK != name:
        return
    k.e("s_memrealtime s[100:101]")
    k.e("s_waitcnt lgkmcnt(0)")
    k.lg = []


def bf16r(k, dst, src):
    k.e(f"v_cvt_pk_bf16_f32 v{dst}, v{src}, v{src}")
    k.e(f"v_lshlrev_b32 v{dst}, 16, v{dst}")


def stats_ops(k, asum, asq, vt, vmean, vrinv, v_diag):
    ops = []
    E = lambda x: ops.append(lambda: k.e(x))
    for b in range(2):
        t = vt + 6 * b
        for r in range(4):
            E(f"v_accvgpr_read_b32 v{t+r}, a{asq[b]+r}")
        E(f"v_accvgpr_read_b32 v{t+4}, a{asum[b]}")
    E("v_and_b32 v5, 3, v2")
    for r in range(1, 4):
        E(f"v_cmp_eq_u32 vcc, {r}, v5")
        E("s_nop 0")
        for b in range(2):
            t = vt + 6 * b
            E(f"v_cndmask_b32 v{t}, v{t}, v{t+r}, vcc")
    for b in range(2):
        t = vt + 6 * b
        ops.append(lambda t=t: k.lds(f"ds_bpermute_b32 v{t+1}, v{v_diag}, v{t}", "st"))
    ops.append(lambda: k.wait_lg(lambda x: x == "st"))
    inv = f32hex(1.0 / 640.0)
    for b in range(2):
        vs, vq = vt + 6 * b + 4, vt + 6 * b + 1
        E(f"v_mul_f32 v{vs}, {inv}, v{vs}")
        E(f"v_mul_f32 v{vq}, {inv}, v{vq}")
        E(f"v_fma_f32 v{vq}, -v{vs}, v{vs}, v{vq}")
        E(f"v_max_f32 v{vq}, 0, v{vq}")
        E(f"v_cvt_pk_bf16_f32 v{vmean[b]}, v{vs}, v{vs}")
        E(f"v_lshlrev_b32 v{vmean[b]}, 16, v{vmean[b]}")
        E(f"v_cvt_pk_bf16_f32 v{vq}, v{vq}, v{vq}")
        E(f"v_lshlrev_b32 v{vq}, 16, v{vq}")
        E(f"v_add_f32 v{vq}, {f32hex(1e-5)}, v{vq}")
        E(f"v_cvt_pk_bf16_f32 v{vq}, v{vq}, v{vq}")
        E(f"v_lshlrev_b32 v{vq}, 16, v{vq}")
        E(f"v_sqrt_f32 v{vq}, v{vq}")
        E("s_nop 0")
        E(f"v_cvt_pk_bf16_f32 v{vq}, v{vq}, v{vq}")
        E(f"v_lshlrev_b32 v{vq}, 16, v{vq}")
        E(f"v_rcp_f32 v{vrinv[b]}, v{vq}")
        E("s_nop 0")
    return ops


def spread(k, main, side):
    n, m = len(main), len(side)
    done = 0
    for i, f in enumerate(main):
        f()
        tgt = (i + 1) * m // n
        while done < tgt:
            side[done]()
            done += 1


def interleave(k, main, extra, every=1):
    extra = list(extra)
    for n, m in enumerate(main):
        m()
        if (n + 1) % every == 0 and extra:
            extra.pop(0)()
    for x in extra:
        x()


def gen_k1():
    k = KB("k1_kernel")
    prologue(k, 256)
    S_X, S_W, S_WS, S_T = 40, 44, 48, 52
    k.e("s_and_b32 s67, s2, 7")
    k.e("s_lshr_b32 s68, s2, 3")
    k.e("s_and_b32 s65, s67, 3")
    k.e("s_lshl_b32 s65, s65, 2")
    k.e("s_and_b32 s69, s68, 3")
    k.e("s_add_u32 s65, s65, s69")
    k.e("s_lshr_b32 s66, s67, 2")
    k.e("s_lshl_b32 s66, s66, 3")
    k.e("s_lshr_b32 s69, s68, 2")
    k.e("s_add_u32 s66, s66, s69")
    k.e("s_waitcnt lgkmcnt(0)")
    k.srd(S_X, P_X, P_X + 1, X_BYTES)
    k.e("s_cmp_lt_u32 s66, 8")
    k.e(f"s_cselect_b32 s70, s{P_WR}, s{P_WI}")
    k.e(f"s_cselect_b32 s71, s{P_WR+1}, s{P_WI+1}")
    k.srd(S_W, 70, 71, WH_BYTES)
    k.srd(S_WS, P_WS, P_WS + 1, L.WS_USED)

    if LEAK:
        k.e("s_cmp_lg_u32 s2, 0")
        k.e("s_cbranch_scc1 k1_nolk")
        k.e("s_cmp_lg_u32 s64, 0")
        k.e("s_cbranch_scc1 k1_nolk")
        k.e("v_mov_b32 v6, s100")
        k.e("v_mov_b32 v5, 0")
        k.e(f"s_mov_b32 s70, {TS_OFF + 2048}")
        k.e(f"buffer_store_dword v6, v5, s[{S_WS}:{S_WS+3}], s70 offen")
        k.label("k1_nolk")
    k.e("s_cmp_lg_u32 s2, 0")
    k.e("s_cbranch_scc1 k1_nozero")
    k.e("s_cmp_lg_u32 s64, 3")
    k.e("s_cbranch_scc1 k1_nozero")
    k.e("v_lshlrev_b32 v5, 8, v1")
    k.e("v_mov_b32 v6, 0")
    k.e(f"s_mov_b32 s70, {L.SYNC_OFF}")
    k.e(f"buffer_store_dword v6, v5, s[{S_WS}:{S_WS+3}], s70 offen")
    k.label("k1_nozero")
    NXR = 4
    XP = 16
    XF = 80
    TI, TO = 112, 144
    V_XL, V_DMA, V_B0, V_B1, V_B2, V_B3 = 176, 177, 178, 179, 180, 181
    V_XW0, V_XW1, V_XR = 182, 183, 184
    V_ONES = 188
    V_DIAG = 192
    V_T = 194
    V_MEAN = [206, 207]
    V_RINV = [208, 209]
    V_TL, V_TS = 210, 211
    V_RM = 212
    V_RR = 220
    V_ST = 228
    V_WX = 229
    V_WS = 230
    XLDS = 102400

    def acc(b, blk):
        return (b * 5 + blk) * 4

    def accw(blk):
        return 40 + blk * 4

    def sf(buf, hh, blk):
        return 60 + buf * 40 + (hh * 5 + blk) * 4

    ASUM = [140, 144]
    ASQ = [148, 152]

    def xf(buf, b, hh):
        return XF + buf * 16 + (b * 2 + hh) * 4

    k.e("s_lshl_b32 s69, s65, 7")
    k.e("s_lshl_b32 s72, s64, 5")
    k.e("s_add_u32 s69, s69, s72")
    k.e("v_lshrrev_b32 v5, 3, v1")
    k.e("v_and_b32 v6, 7, v1")
    k.e("v_add_u32 v7, s69, v5")
    k.e("v_mul_u32_u24 v7, 1280, v7")
    k.e("v_lshlrev_b32 v8, 4, v6")
    k.e(f"v_add_u32 v{V_XL}, v7, v8")
    k.e("v_xor_b32 v8, v6, v5")
    k.e("v_lshlrev_b32 v8, 4, v8")
    k.e("v_mul_u32_u24 v7, 1280, v5")
    k.e(f"v_add_u32 v{V_DMA}, v7, v8")
    k.e("s_lshr_b32 s75, s64, 1")
    k.e("s_and_b32 s76, s64, 1")
    k.e("s_mul_i32 s73, s75, 10240")
    k.e("s_mul_i32 s77, s76, 5120")
    k.e("s_add_u32 s73, s73, s77")
    k.e("s_and_b32 s74, s66, 7")
    k.e("s_mul_i32 s74, s74, 102400")
    k.e("s_mul_i32 s77, s76, 51200")
    k.e("s_add_u32 s74, s74, s77")
    k.e("s_lshl_b32 s77, s75, 7")
    k.e("s_add_u32 s74, s74, s77")
    for i in range(4):
        k.e(f"s_mov_b32 s{93+i}, {i*8*1280}")

    def xr(q, i):
        return v4(XP + q * 16 + i * 4) if q < 4 else a4(156 + (q - 4) * 16 + i * 4)

    def xload_ops(q):
        return [lambda i=i: k.vmem(f"buffer_load_dwordx4 {xr(q, i)}, v{V_XL}, s[{S_X}:{S_X+3}], s{93+i} offen offset:{q*128}", ("x", q)) for i in range(4)]

    def wdma_ops(Q):
        ops = []
        for i in range(5):
            def f(i=i):
                k.e(f"s_add_u32 m0, s73, {Q*20480 + i*1024}")
                k.e(f"s_add_u32 s77, s74, {Q*256 + i*10240}")
                k.vmem(f"buffer_load_dwordx4 v{V_DMA}, s[{S_W}:{S_W+3}], s77 offen lds", ("dma", Q))
            ops.append(f)
        return ops

    for op in xload_ops(0) + wdma_ops(0) + xload_ops(1) + xload_ops(2) + wdma_ops(1):
        op()
    k.e("v_and_b32 v8, 3, v5")
    k.e("v_xor_b32 v8, v8, v6")
    k.e("v_lshlrev_b32 v8, 4, v8")
    k.e("v_lshlrev_b32 v7, 7, v5")
    k.e("v_add_u32 v7, v7, v8")
    k.e("s_lshl_b32 s72, s64, 12")
    k.e(f"s_add_u32 s72, s72, {XLDS}")
    k.e(f"v_add_u32 v{V_XW0}, s72, v7")
    k.e(f"v_xor_b32 v{V_XW1}, 64, v{V_XW0}")
    k.e("v_and_b32 v5, 7, v2")
    k.e("v_xor_b32 v5, v5, v3")
    k.e("v_lshlrev_b32 v5, 4, v5")
    k.e("v_lshlrev_b32 v6, 7, v2")
    k.e(f"v_add_u32 v{V_B0}, v5, v6")
    k.e(f"v_xor_b32 v{V_B1}, 64, v{V_B0}")
    k.e(f"v_add_u32 v{V_B2}, 61440, v{V_B0}")
    k.e(f"v_add_u32 v{V_B3}, 61440, v{V_B1}")
    k.e("v_lshrrev_b32 v6, 2, v2")
    k.e("v_lshlrev_b32 v6, 3, v6")
    k.e("v_and_b32 v7, 3, v2")
    k.e("v_add_u32 v6, v6, v7")
    k.e("v_lshlrev_b32 v6, 7, v6")
    k.e("v_add_u32 v6, v6, v5")
    k.e(f"v_add_u32 v{V_XR}, s72, v6")
    k.e(f"v_xor_b32 v{V_XR+1}, 64, v{V_XR}")
    k.e(f"v_add_u32 v{V_XR+2}, 512, v{V_XR}")
    k.e(f"v_add_u32 v{V_XR+3}, 512, v{V_XR+1}")
    for i in range(4):
        k.e(f"v_mov_b32 v{V_ONES+i}, 0x3f803f80")
    k.e("v_lshrrev_b32 v6, 2, v2")
    k.e("v_lshlrev_b32 v6, 4, v6")
    k.e("v_add_u32 v6, v6, v2")
    k.e(f"v_lshlrev_b32 v{V_DIAG}, 2, v6")
    k.e("v_mov_b32 v5, 0")
    for i in range(20):
        k.e(f"v_accvgpr_write_b32 a{40+i}, v5")

    k.e("s_mul_hi_u32 s80, s2, 0xcccccccd")
    k.e("s_lshr_b32 s80, s80, 4")
    k.e("s_mul_i32 s81, s80, 20")
    k.e("s_sub_u32 s81, s2, s81")
    k.e("s_mul_hi_u32 s82, s2, 0xaaaaaaab")
    k.e("s_lshr_b32 s82, s82, 5")
    k.e("s_mul_i32 s83, s82, 48")
    k.e("s_sub_u32 s83, s2, s83")
    k.e(f"s_mul_i32 s84, s81, {32*3072}")
    k.e("s_lshl_b32 s89, s80, 8")
    k.e("s_add_u32 s84, s84, s89")
    k.e(f"s_add_u32 s85, s84, {16*3072}")
    k.e("s_mov_b32 s86, 3072")
    k.e(f"s_mul_i32 s87, s80, {8*20*1024}")
    k.e("s_lshl_b32 s89, s81, 10")
    k.e("s_add_u32 s87, s87, s89")
    k.e(f"s_add_u32 s87, s87, {L.WGF_OFF}")
    k.e(f"s_mul_i32 s89, s64, {L.WUF_OFF - L.WGF_OFF}")
    k.e("s_add_u32 s87, s87, s89")
    k.e(f"s_mov_b32 s88, {20*1024}")
    k.e(f"v_mul_u32_u24 v5, {4*3072}, v3")
    k.e("v_lshlrev_b32 v6, 4, v2")
    k.e(f"v_add_u32 v{V_TL}, v5, v6")
    k.e(f"v_lshlrev_b32 v{V_TS}, 4, v1")
    k.e("s_cmp_eq_u32 s64, 0")
    k.e(f"s_cselect_b32 s70, s{P_WG}, s{P_WU}")
    k.e(f"s_cselect_b32 s71, s{P_WG+1}, s{P_WU+1}")
    k.e("s_cmp_lt_u32 s64, 2")
    k.e("s_cbranch_scc1 k1_tparam_done")
    k.e(f"s_mov_b32 s70, s{P_WD}")
    k.e(f"s_mov_b32 s71, s{P_WD+1}")
    k.e("s_lshl_b32 s89, s83, 1")
    k.e("s_lshr_b32 s90, s89, 3")
    k.e("s_lshl_b32 s90, s90, 7")
    k.e("s_and_b32 s91, s89, 7")
    k.e("s_add_u32 s90, s90, s91")
    k.e("s_mul_i32 s84, s90, 1280")
    k.e("s_lshl_b32 s91, s82, 8")
    k.e("s_add_u32 s84, s84, s91")
    k.e("s_add_u32 s85, s84, 1280")
    k.e(f"s_mov_b32 s86, {8*1280}")
    k.e(f"s_mul_i32 s87, s82, {8*48*1024}")
    k.e("s_lshl_b32 s91, s83, 10")
    k.e("s_add_u32 s87, s87, s91")
    k.e(f"s_add_u32 s87, s87, {L.WDF_OFF}")
    k.e("s_mov_b32 s88, 16")
    k.e(f"v_mul_u32_u24 v5, {32*1280}, v3")
    k.e(f"v_add_u32 v{V_TL}, v5, v6")
    k.e("v_lshrrev_b32 v5, 1, v2")
    k.e(f"v_mul_u32_u24 v5, {48*1024}, v5")
    k.e("v_lshlrev_b32 v6, 8, v3")
    k.e("v_add_u32 v5, v5, v6")
    k.e("v_and_b32 v6, 1, v2")
    k.e("v_lshlrev_b32 v6, 7, v6")
    k.e(f"v_add_u32 v{V_TS}, v5, v6")
    k.label("k1_tparam_done")
    k.srd(S_T, 70, 71, WF_BYTES)
    k.e("s_cmp_lt_u32 s2, 240")
    k.e("s_cselect_b32 s92, 1, 0")
    k.e("s_cmp_lt_u32 s64, 3")
    k.e("s_cselect_b32 s92, s92, 0")
    k.e("s_cmp_eq_u32 s92, 0")
    k.e("s_cselect_b32 s92, 0x40000000, 0")
    k.e(f"v_add_u32 v{V_TL}, s92, v{V_TL}")
    k.e(f"v_add_u32 v{V_TS}, s92, v{V_TS}")
    k.e("s_mov_b32 s90, 0x05040100")
    k.e("s_mov_b32 s91, 0x07060302")

    def tload_ops():
        ops = []
        for i in range(8):
            def f(i=i):
                k.e(f"s_mul_i32 s89, s86, {i % 4}")
                k.e(f"s_add_u32 s89, s89, s{84 + i // 4}")
                k.vmem(f"buffer_load_dwordx4 {v4(TI + i*4)}, v{V_TL}, s[{S_T}:{S_T+3}], s89 offen", ("t",))
            ops.append(f)
        return ops

    def tfin_ops():
        ops = [lambda: k.wait_vm(lambda t: t == ("t",))]
        for u in range(8):
            for p in range(4):
                ops.append(lambda u=u, p=p: k.e(f"v_perm_b32 v{TO + u*4 + p}, v{TI + (2*p+1)*4 + u//2}, v{TI + (2*p)*4 + u//2}, s{90 + (u&1)}"))
            def st(u=u):
                k.vmem(f"buffer_store_dwordx4 {v4(TO + u*4)}, v{V_TS}, s[{S_WS}:{S_WS+3}], s87 offen{K1SC}", ("st",))
                k.e("s_add_u32 s87, s87, s88")
            ops.append(st)
        return ops

    def fetch_ops(q):
        ops = []
        for i in range(4):
            ops.append(lambda i=i: k.lds(f"ds_write_b128 v{V_XW0 + (i&1)}, {xr(q, i)} offset:{i*1024}", ("f", q)))
        for b in range(2):
            for hh in range(2):
                ops.append(lambda b=b, hh=hh: k.lds(f"ds_read_b128 {v4(xf(q&1,b,hh))}, v{V_XR + b*2 + hh}", ("f", q)))
        for hh in range(2):
            for blk in range(5):
                off = q * 10240 + blk * 2048
                base = V_B0 + hh
                if q >= 6:
                    off -= 61440
                    base += 2
                ops.append(lambda hh=hh, blk=blk, off=off, base=base: k.lds(f"ds_read_b128 {a4(sf(q&1,hh,blk))}, v{base} offset:{off}", ("f", q)))
        return ops

    def pre_fetch(q):
        k.wait_vm(lambda t: t == ("x", q) or (q % 2 == 0 and t == ("dma", q // 2)))
        if q % 2 == 0:
            k.e("s_barrier")

    PF = int(os.environ.get("PF", "128"))
    PFQ = int(os.environ.get("PFQ", "3"))
    pf_ops = []
    if PF:
        S_PF = 56
        k.e("s_cmp_lt_u32 s2, 128")
        k.e(f"s_cselect_b32 s70, s{P_CR}, s{P_CI}")
        k.e(f"s_cselect_b32 s71, s{P_CR+1}, s{P_CI+1}")
        k.srd(S_PF, 70, 71, C_BYTES)
        k.e("s_and_b32 s60, s2, 127")
        k.e("s_lshl_b32 s60, s60, 16")
        k.e("s_lshl_b32 s61, s64, 14")
        k.e("s_add_u32 s60, s60, s61")
        k.e(f"v_mul_u32_u24 v250, {PF}, v1")
        for i in range(16384 // (64 * PF)):
            def f(i=i):
                k.e(f"s_add_u32 s61, s60, {i*64*PF}")
                k.vmem(f"buffer_load_dword v251, v250, s[{S_PF}:{S_PF+3}], s61 offen", ("pf",))
            pf_ops.append(f)
    k.stamp()
    pre_fetch(0)
    k.stamp()
    for op in fetch_ops(0):
        op()
    for q in range(10):
        k.wait_lg_all()
        side = []
        if q + 1 < 10:
            pre_fetch(q + 1)
            side += fetch_ops(q + 1)
        if q < 3:
            side += xload_ops(2 * q + 3) + wdma_ops(q + 2) + xload_ops(2 * q + 4)
        if q == 3:
            side += xload_ops(9) + tload_ops()
        if q == PFQ:
            side += pf_ops
        if q == 8:
            side += tfin_ops()
        main = []
        M = lambda x: main.append(lambda: k.e(x))
        for hh in range(2):
            first = (q == 0 and hh == 0)
            for b in range(2):
                M(f"v_mfma_f32_16x16x32_bf16 {a4(ASUM[b])}, {v4(V_ONES)}, {v4(xf(q&1,b,hh))}, {'0' if first else a4(ASUM[b])}")
                M(f"v_mfma_f32_16x16x32_bf16 {a4(ASQ[b])}, {v4(xf(q&1,b,hh))}, {v4(xf(q&1,b,hh))}, {'0' if first else a4(ASQ[b])}")
            for blk in range(5):
                for b in range(2):
                    cin = "0" if first else a4(acc(b, blk))
                    M(f"v_mfma_f32_16x16x32_bf16 {a4(acc(b,blk))}, {v4(xf(q&1,b,hh))}, {a4(sf(q&1,hh,blk))}, {cin}")
        spread(k, main, side)
        for hh in range(2):
            lab = f"k1_ws_{q}_{hh}"
            k.e(f"s_cmp_lg_u32 s64, {(2*q+hh) % 4}")
            k.e(f"s_cbranch_scc1 {lab}")
            for blk in range(5):
                k.e(f"v_mfma_f32_16x16x32_bf16 {a4(accw(blk))}, {v4(V_ONES)}, {a4(sf(q&1,hh,blk))}, {a4(accw(blk))}")
            k.label(lab)
        if q in (1, 5):
            k.stamp()
    k.stamp()
    k.e("s_nop 7")
    k.e(f"v_lshlrev_b32 v{V_WX}, 2, v1")
    k.e(f"v_add_u32 v5, s72, v{V_WX}")
    for blk in range(5):
        k.e(f"v_accvgpr_read_b32 v{V_WS+blk}, a{accw(blk)}")
    for blk in range(5):
        k.lds(f"ds_write_b32 v5, v{V_WS+blk} offset:{blk*256}", "wx")
    for op in stats_ops(k, ASUM, ASQ, V_T, V_MEAN, V_RINV, V_DIAG):
        op()
    k.wait_lg_all()
    k.e("s_barrier")
    k.e(f"v_add_u32 v{V_WX}, {XLDS}, v{V_WX}")
    for w in range(4):
        for blk in range(5):
            k.lds(f"ds_read_b32 v{V_WS + w*5 + blk}, v{V_WX} offset:{w*4096 + blk*256}", "wx")
    for r in range(4):
        k.e(f"v_lshlrev_b32 v{6+r}, 2, v3")
        k.e(f"v_add_u32 v{6+r}, {r}, v{6+r}")
        k.e(f"v_lshlrev_b32 v{6+r}, 2, v{6+r}")
        for b in range(2):
            k.lds(f"ds_bpermute_b32 v{V_RM + b*4 + r}, v{6+r}, v{V_MEAN[b]}", "st")
            k.lds(f"ds_bpermute_b32 v{V_RR + b*4 + r}, v{6+r}, v{V_RINV[b]}", "st")
    k.e("s_cmp_lt_u32 s66, 8")
    k.e("s_cselect_b32 s78, 1.0, -1.0")
    k.e(f"v_lshlrev_b32 v{V_ST}, 4, v1")
    k.e(f"s_mul_i32 s79, s66, {5*64*1024}")
    k.e("s_lshl_b32 s77, s65, 12")
    k.e("s_add_u32 s79, s79, s77")
    k.e("s_lshl_b32 s77, s64, 10")
    k.e("s_add_u32 s79, s79, s77")
    if L.ABF_OFF:
        k.e(f"s_add_u32 s79, s79, {L.ABF_OFF}")
    k.wait_lg_all()
    for blk in range(5):
        k.e(f"v_add_f32 v{V_WS+blk}, v{V_WS+blk}, v{V_WS+5+blk}")
        k.e(f"v_add_f32 v{V_WS+10+blk}, v{V_WS+10+blk}, v{V_WS+15+blk}")
        k.e(f"v_add_f32 v{V_WS+blk}, v{V_WS+blk}, v{V_WS+10+blk}")
    for i in range(8):
        k.e(f"v_mul_f32 v{V_RR+i}, s78, v{V_RR+i}")
    EP = 16
    for blk in range(5):
        w = EP + blk * 12
        for b in range(2):
            for r in range(4):
                k.e(f"v_accvgpr_read_b32 v{w+b*4+r}, a{acc(b,blk)+r}")
        for b in range(2):
            for r in range(4):
                k.e(f"v_fma_f32 v{w+b*4+r}, -v{V_RM+b*4+r}, v{V_WS+blk}, v{w+b*4+r}")
                k.e(f"v_mul_f32 v{w+b*4+r}, v{V_RR+b*4+r}, v{w+b*4+r}")
        for p in range(4):
            k.e(f"v_cvt_pk_bf16_f32 v{w+8+p}, v{w+2*p}, v{w+2*p+1}")
        k.e(f"s_add_u32 s77, s79, {blk*64*1024}")
        k.vmem(f"buffer_store_dwordx4 {v4(w+8)}, v{V_ST}, s[{S_WS}:{S_WS+3}], s77 offen{K1SC}", ("st",))
    if LEAK:
        k.e("s_waitcnt vmcnt(0)")
        k.e("s_barrier")
        k.e("s_cmp_lg_u32 s64, 0")
        k.e("s_cbranch_scc1 k1_nolk2")
        k.e("s_memrealtime s[100:101]")
        k.e("s_waitcnt lgkmcnt(0)")
        k.e("v_mov_b32 v6, s100")
        k.e("v_mov_b32 v5, 0")
        k.e("s_lshl_b32 s70, s2, 2")
        k.e(f"s_add_u32 s70, s70, {TS_OFF}")
        k.e(f"buffer_store_dword v6, v5, s[{S_WS}:{S_WS+3}], s70 offen")
        k.label("k1_nolk2")
    k.stamp_flush()
    k.label(f"{k.name}_end")
    k.e("s_endpgm")
    return k, dict(vgpr=256, agpr=252, lds=102400 + 16384, grid=256, block=256)


def t2_reduce(k, isk2, accf, V_LW, V_LR0, V_LR1, Q, V_RES, OB, mid=None):
    for tb in range(4):
        for blk in range(5):
            k.lds(f"ds_write_b128 v{V_LW}, {accf(blk,tb)} offset:{(tb*5+blk)*1024}", "w")
    if mid:
        mid()
    k.wait_lg_all()
    k.e("s_barrier")

    def q(src, blk):
        return Q + (src * 5 + blk) * 4

    for blk in range(5):
        for src in range(4):
            base = V_LR0 if src < 2 else V_LR1
            off = (src % 2) * 20480 + blk * 1024
            k.lds(f"ds_read_b128 {v4(q(src,blk))}, v{base} offset:{off}", ("q", blk))
    k.wait_vm(lambda t: t == ("res",))
    T = Q + 80
    for blk in range(5):
        k.wait_lg(lambda t: t == ("q", blk))
        if isk2:
            for r in range(4):
                k.e(f"v_add_f32 v{q(0,blk)+r}, v{q(0,blk)+r}, v{q(1,blk)+r}")
                k.e(f"v_add_f32 v{q(2,blk)+r}, v{q(2,blk)+r}, v{q(3,blk)+r}")
            for p in range(2):
                k.e(f"v_cvt_pk_bf16_f32 v{T+p}, v{q(0,blk)+2*p}, v{q(0,blk)+2*p+1}")
                k.e(f"v_cvt_pk_bf16_f32 v{T+2+p}, v{q(2,blk)+2*p}, v{q(2,blk)+2*p+1}")
            for p in range(2):
                k.e(f"v_lshlrev_b32 v{T+4}, 16, v{T+p}")
                k.e(f"v_and_b32 v{T+5}, 0xffff0000, v{T+p}")
                k.e(f"v_lshlrev_b32 v{T+6}, 16, v{T+2+p}")
                k.e(f"v_and_b32 v{T+7}, 0xffff0000, v{T+2+p}")
                k.e(f"v_add_f32 v{T+4}, v{T+4}, v{T+6}")
                k.e(f"v_add_f32 v{T+5}, v{T+5}, v{T+7}")
                k.e(f"v_cvt_pk_bf16_f32 v{T+8+p}, v{T+4}, v{T+5}")
        else:
            for r in range(4):
                k.e(f"v_add_f32 v{q(0,blk)+r}, v{q(0,blk)+r}, v{q(1,blk)+r}")
                k.e(f"v_add_f32 v{q(2,blk)+r}, v{q(2,blk)+r}, v{q(3,blk)+r}")
                k.e(f"v_add_f32 v{q(0,blk)+r}, v{q(0,blk)+r}, v{q(2,blk)+r}")
            for p in range(2):
                k.e(f"v_cvt_pk_bf16_f32 v{T+8+p}, v{q(0,blk)+2*p}, v{q(0,blk)+2*p+1}")
        o = OB + 2 * blk
        for p in range(2):
            rr = V_RES + 2 * blk + p
            k.e(f"v_lshlrev_b32 v{T+4}, 16, v{T+8+p}")
            k.e(f"v_and_b32 v{T+5}, 0xffff0000, v{T+8+p}")
            k.e(f"v_lshlrev_b32 v{T+6}, 16, v{rr}")
            k.e(f"v_and_b32 v{T+7}, 0xffff0000, v{rr}")
            k.e(f"v_add_f32 v{T+4}, v{T+4}, v{T+6}")
            k.e(f"v_add_f32 v{T+5}, v{T+5}, v{T+7}")
            k.e(f"v_cvt_pk_bf16_f32 v{o+p}, v{T+4}, v{T+5}")


def t2_rowmajor_off(k, V_R):
    k.e("s_lshl_b32 s75, s65, 6")
    k.e("s_lshl_b32 s76, s64, 4")
    k.e("s_add_u32 s75, s75, s76")
    k.e("v_add_u32 v5, s75, v2")
    k.e("v_mul_u32_u24 v5, 1280, v5")
    k.e("v_lshlrev_b32 v6, 3, v3")
    k.e("v_add_u32 v5, v5, v6")
    k.e("s_mul_i32 s75, s66, 160")
    k.e(f"v_add_u32 v{V_R}, s75, v5")


TK_LDS = 147456
WSX_LDS = 131072
S_WS = 48
SPIN_MAX = 1 << 16


def seam(k, name, phase, between):
    k.stamp(tag=name)
    k.wait_vm_all()
    k.stamp(tag=name)
    k.e("s_barrier")
    k.stamp(tag=name)
    k.e("s_cmp_lg_u32 s64, 0")
    k.e(f"s_cbranch_scc1 {name}_a")
    k.e("s_mov_b64 exec, 1")
    k.e("v_mov_b32 v5, 1")
    k.e("v_mov_b32 v6, 0")
    k.e("s_lshl_b32 s9, s5, 9")
    k.e(f"s_add_u32 s9, s9, {L.SYNC_OFF + 8*256 + phase*256}")
    k.e(f"buffer_atomic_add v5, v6, s[{S_WS}:{S_WS+3}], s9 offen sc0 sc1")
    k.e("s_mov_b64 exec, -1")
    k.label(f"{name}_a")
    n0 = len(k.vm)
    between()
    nb = len(k.vm) - n0
    k.stamp(tag=name)
    k.e("s_cmp_lg_u32 s64, 0")
    k.e(f"s_cbranch_scc1 {name}_b")
    k.e(f"s_waitcnt vmcnt({min(nb, 63)})")
    k.stamp(tag=name)
    k.e("s_mov_b64 exec, 1")
    k.e("v_readfirstlane_b32 s8, v5")
    k.e("s_cmp_ge_u32 s8, 15")
    k.e(f"s_cbranch_scc1 {name}_done")
    k.e("s_mov_b32 s7, 0")
    k.label(f"{name}_poll")
    k.e(f"buffer_load_dword v5, v6, s[{S_WS}:{S_WS+3}], s9 offen sc1")
    k.e("s_waitcnt vmcnt(0)")
    k.e("v_readfirstlane_b32 s8, v5")
    k.e("s_cmp_ge_u32 s8, 16")
    k.e(f"s_cbranch_scc1 {name}_done")
    k.e("s_sleep 1")
    k.e("s_add_u32 s7, s7, 1")
    k.e(f"s_cmp_lt_u32 s7, {SPIN_MAX}")
    k.e(f"s_cbranch_scc1 {name}_poll")
    k.label(f"{name}_done")
    k.e("s_mov_b64 exec, -1")
    k.label(f"{name}_b")
    k.e("s_barrier")
    k.stamp(tag=name)


def gen_f(NST=3, NSLOT=4):
    k = KB("kf_kernel")
    prologue(k, 256)
    S_B, S_R, S_O = 44, 52, 56
    k.e("s_getreg_b32 s3, hwreg(HW_REG_XCC_ID)")
    k.e("s_and_b32 s3, s3, 7")
    if os.environ.get("FAKEX"):
        k.e("s_lshr_b32 s3, s2, 6")
    k.e("s_waitcnt lgkmcnt(0)")
    k.srd(S_WS, P_WS, P_WS + 1, L.WS_USED)
    k.e("s_cmp_lg_u32 s64, 0")
    k.e("s_cbranch_scc1 kf_tk_wait")
    k.e("s_mov_b64 exec, 1")
    k.e("v_mov_b32 v6, 0")
    k.e("s_mov_b32 s7, 0")
    k.label("kf_tk_loop")
    k.e("s_add_u32 s8, s3, s7")
    k.e("s_and_b32 s8, s8, 7")
    k.e("s_lshl_b32 s9, s8, 8")
    k.e(f"s_add_u32 s9, s9, {L.SYNC_OFF}")
    k.e("v_mov_b32 v5, 1")
    k.e(f"buffer_atomic_add v5, v6, s[{S_WS}:{S_WS+3}], s9 offen sc0 sc1")
    k.e("s_waitcnt vmcnt(0)")
    k.e("v_readfirstlane_b32 s9, v5")
    k.e("s_cmp_lt_u32 s9, 32")
    k.e("s_cbranch_scc1 kf_tk_done")
    k.e("s_add_u32 s7, s7, 1")
    k.e("s_cmp_lt_u32 s7, 8")
    k.e("s_cbranch_scc1 kf_tk_loop")
    k.e("s_mov_b32 s8, 8")
    k.e("s_mov_b32 s9, 0")
    k.label("kf_tk_done")
    k.e("s_lshl_b32 s8, s8, 5")
    k.e("s_add_u32 s8, s8, s9")
    k.e("v_mov_b32 v5, s8")
    k.e(f"v_mov_b32 v6, {TK_LDS}")
    k.e("ds_write_b32 v6, v5")
    k.e("s_waitcnt lgkmcnt(0)")
    k.e("s_mov_b64 exec, -1")
    k.label("kf_tk_wait")

    k.e("s_cmp_lt_u32 s64, 2")
    k.e(f"s_cselect_b32 s70, s{P_CR}, s{P_CI}")
    k.e(f"s_cselect_b32 s71, s{P_CR+1}, s{P_CI+1}")
    k.srd(S_B, 70, 71, C_BYTES)
    k.srd(S_R, P_X, P_X + 1, X_BYTES)
    k.srd(S_O, P_OUT, P_OUT + 1, X_BYTES)
    V_A = 8
    V_DMA = 13
    V_BR = 14
    V_R, V_H = 16, 17
    V_RES = 18
    V_LW, V_LR0, V_LR1 = 28, 29, 30
    STG = 32
    BF = STG + NST * 40
    assert BF + 64 <= 246
    V_HK = 246

    def fa(s, hh, blk):
        return STG + (s % NST) * 40 + (hh * 5 + blk) * 4

    def fb(s, hh, tb):
        return BF + (s & 1) * 32 + (hh * 4 + tb) * 4

    def acc(blk, tb):
        return (blk * 4 + tb) * 4

    k.e(f"v_lshlrev_b32 v{V_H}, 4, v1")
    k.e("v_lshrrev_b32 v5, 3, v1")
    k.e("v_and_b32 v6, 7, v1")
    k.e("v_xor_b32 v6, v6, v5")
    k.e("v_lshlrev_b32 v6, 4, v6")
    k.e("v_lshlrev_b32 v5, 12, v5")
    k.e(f"v_add_u32 v{V_DMA}, v5, v6")
    k.e(f"s_mul_i32 s73, s64, {NSLOT*8192}")
    k.e("v_and_b32 v5, 7, v2")
    k.e("v_xor_b32 v5, v5, v3")
    k.e("v_lshlrev_b32 v5, 4, v5")
    k.e("v_lshlrev_b32 v6, 7, v2")
    k.e("v_add_u32 v5, v5, v6")
    k.e(f"v_add_u32 v{V_BR}, s73, v5")
    k.e(f"v_xor_b32 v{V_BR+1}, 64, v{V_BR}")
    k.e("s_mul_i32 s75, s64, 20480")
    k.e(f"v_add_u32 v{V_LW}, s75, v{V_H}")
    k.e("s_mul_i32 s75, s64, 5120")
    k.e(f"v_add_u32 v{V_LR0}, s75, v{V_H}")
    k.e(f"v_add_u32 v{V_LR1}, 40960, v{V_LR0}")
    k.e(f"v_mov_b32 v6, {TK_LDS}")
    k.e("s_barrier")
    k.e("ds_read_b32 v5, v6")
    k.e("s_waitcnt lgkmcnt(0)")
    k.e("v_readfirstlane_b32 s4, v5")
    k.e("s_cmp_ge_u32 s4, 256")
    k.e(f"s_cbranch_scc1 {k.name}_end")
    k.e("s_lshr_b32 s5, s4, 4")
    k.e("s_and_b32 s6, s4, 15")
    k.e("s_lshr_b32 s65, s4, 3")
    k.e("s_and_b32 s66, s4, 7")
    leak(k, "tk")
    k.stamp()
    k.e("s_and_b32 s72, s64, 1")
    k.e("s_lshl_b32 s74, s65, 18")
    k.e("s_lshl_b32 s75, s72, 11")
    k.e("s_add_u32 s74, s74, s75")
    k.e("s_lshl_b32 s75, s72, 15")
    k.e("s_lshr_b32 s72, s64, 1")
    k.e("s_mul_i32 s72, s72, 40")
    k.e("s_mul_i32 s76, s66, 5")
    k.e("s_add_u32 s72, s72, s76")
    k.e("s_lshl_b32 s72, s72, 16")
    k.e("s_add_u32 s72, s72, s75")
    if L.ABF_OFF:
        k.e(f"s_add_u32 s72, s72, {L.ABF_OFF}")
    k.e(f"v_add_u32 v{V_A}, s72, v{V_H}")
    for blk in range(1, 5):
        k.e(f"v_add_u32 v{V_A+blk}, {blk*65536}, v{V_A}")

    def a_ops(s):
        ops = []
        for hh in range(2):
            for blk in range(5):
                def f(hh=hh, blk=blk):
                    if hh == 0 and blk == 0:
                        k.e(f"s_mov_b32 s80, {s*2048}")
                    k.vmem(f"buffer_load_dwordx4 {v4(fa(s,hh,blk))}, v{V_A+blk}, s[{S_WS}:{S_WS+3}], s80 offen offset:{hh*1024}", ("a", s))
                ops.append(f)
        return ops

    def c_ops(s):
        ops = []
        for i in range(8):
            def f(i=i):
                k.e(f"s_add_u32 m0, s73, {(s % NSLOT)*8192 + i*1024}")
                k.e(f"s_add_u32 s77, s74, {i*8*4096 + s*128}")
                k.vmem(f"buffer_load_dwordx4 v{V_DMA}, s[{S_B}:{S_B+3}], s77 offen lds", ("c", s))
            ops.append(f)
        return ops

    def b_ops(s):
        ops = []
        for hh in range(2):
            for tb in range(4):
                ops.append(lambda hh=hh, tb=tb: k.lds(f"ds_read_b128 {v4(fb(s,hh,tb))}, v{V_BR+hh} offset:{(s % NSLOT)*8192 + tb*2048}", ("b", s)))
        return ops

    NS = 16
    for s in range(NSLOT):
        for op in c_ops(s):
            op()
        if s < NST - 1:
            for op in a_ops(s):
                op()
    t2_rowmajor_off(k, V_R)
    for blk in range(5):
        k.vmem(f"buffer_load_dwordx2 {v2(V_RES+2*blk)}, v{V_R}, s[{S_R}:{S_R+3}], 0 offen offset:{blk*32}", ("res",))
    k.e("s_lshl_b32 s75, s65, 2")
    k.e("s_add_u32 s75, s75, s64")
    k.e(f"s_mul_i32 s75, s75, {20*1024}")
    k.e(f"s_add_u32 s75, s75, {L.H_OFF}")
    k.e("s_mul_i32 s76, s66, 5")
    k.e("s_lshr_b32 s76, s76, 1")
    k.e("s_lshl_b32 s76, s76, 10")
    k.e("s_add_u32 s84, s75, s76")
    k.e("s_lshr_b32 s75, s64, 1")
    k.e("s_and_b32 s76, s64, 1")
    k.e(f"s_mul_i32 s11, s75, {96*20480}")
    k.e(f"s_add_u32 s11, s11, {L.WGF_OFF}")
    k.e(f"s_mul_i32 s77, s6, {6*20480}")
    k.e("s_add_u32 s11, s11, s77")
    k.e(f"s_mul_i32 s77, s76, 20480")
    k.e("s_add_u32 s11, s11, s77")
    k.e("s_lshl_b32 s10, s64, 12")
    k.e(f"s_mul_i32 s13, s64, {12*1024}")
    k.e(f"s_mul_i32 s77, s66, {5*48*1024}")
    k.e("s_add_u32 s13, s13, s77")
    k.e(f"s_add_u32 s13, s13, {L.WDF_OFF}")

    CH = 16384

    def slot3(ci):
        return (ci + 5) % 8

    def dma_ops(ci, vreg):
        P, q = divmod(ci, 5)
        ops = []
        for jj in range(4):
            def f(jj=jj):
                k.e(f"s_add_u32 m0, s10, {slot3(ci)*CH + jj*1024}")
                k.e(f"s_add_u32 s12, s11, {2*P*20480 + (4*q+jj)*1024}")
                k.vmem(f"buffer_load_dwordx4 v{vreg}, s[{S_WS}:{S_WS+3}], s12 offen lds", ("dma", ci))
            ops.append(f)
        return ops

    k.wait_vm(lambda t: t == ("c", 0))
    leak(k, "c0")
    k.stamp()
    for op in b_ops(0):
        op()
    for s in range(NS):
        k.wait_lg_all()
        ex = []
        if s + 1 < NS:
            k.wait_vm(lambda t: t == ("c", s + 1) or t == ("a", s))
            ex += b_ops(s + 1)
        else:
            k.wait_vm(lambda t: t == ("a", s))
        if s + NSLOT < NS:
            ex += c_ops(s + NSLOT)
        if s + NST - 1 < NS:
            ex += a_ops(s + NST - 1)
        main = []
        for hh in range(2):
            for blk in range(5):
                for tb in range(4):
                    cin = "0" if (s == 0 and hh == 0) else a4(acc(blk, tb))
                    main.append(lambda hh=hh, blk=blk, tb=tb, cin=cin: k.e(f"v_mfma_f32_16x16x32_bf16 {a4(acc(blk,tb))}, {v4(fa(s,hh,blk))}, {v4(fb(s,hh,tb))}, {cin}"))
        interleave(k, main, ex)
        if s == 7:
            k.stamp()
    k.stamp()
    leak(k, "k2e")
    k.e("s_nop 7")
    k.e("s_nop 7")
    k.e("s_barrier")

    def mid2():
        for ci in range(3):
            for op in dma_ops(ci, V_H):
                op()

    t2_reduce(k, True, lambda blk, tb: a4(acc(blk, tb)), V_LW, V_LR0, V_LR1, STG, V_RES, V_HK, mid2)
    k.e("s_bitcmp1_b32 s66, 0")
    k.e("s_cbranch_scc1 kf_h_odd")
    k.e(f"buffer_store_dwordx4 {v4(V_HK)}, v{V_H}, s[{S_WS}:{S_WS+3}], s84 offen sc1")
    k.e(f"buffer_store_dwordx4 {v4(V_HK+4)}, v{V_H}, s[{S_WS}:{S_WS+3}], s84 offen offset:1024 sc1")
    k.e(f"buffer_store_dwordx2 {v2(V_HK+8)}, v{V_H}, s[{S_WS}:{S_WS+3}], s84 offen offset:2048 sc1")
    k.e("s_branch kf_h_done")
    k.label("kf_h_odd")
    k.e(f"buffer_store_dwordx2 {v2(V_HK)}, v{V_H}, s[{S_WS}:{S_WS+3}], s84 offen offset:8 sc1")
    k.e(f"buffer_store_dwordx4 {v4(V_HK+2)}, v{V_H}, s[{S_WS}:{S_WS+3}], s84 offen offset:1024 sc1")
    k.e(f"buffer_store_dwordx4 {v4(V_HK+6)}, v{V_H}, s[{S_WS}:{S_WS+3}], s84 offen offset:2048 sc1")
    k.label("kf_h_done")
    k.stamp()

    def panel(b, j):
        return (b * 20 + j) * 4

    ASUM = [160, 164]
    ASQ = [168, 172]

    def sf(buf, n):
        return 176 + buf * 16 + n * 4

    def acc3(P, n, b):
        return 16 + (P & 1) * 32 + (n * 2 + b) * 4

    W0, W1, W2, W3 = 80, 96, 112, 200
    V_P0, V_P1, V_L16 = 128, 129, 130
    V_WX = 131
    V_B = 132
    V_ONES = 136
    V_DIAG = 140
    V_ST = 141
    V_WR = 142
    V_MEAN = [144, 145]
    V_RINV = [146, 147]
    V_C = 148
    V_ONE = 156
    V_T = 160
    V_X = 184

    def between1():
        for ci in range(3, 8):
            for op in dma_ops(ci, V_H):
                op()
        k.e(f"v_lshlrev_b32 v{V_L16}, 4, v1")
        k.e("s_lshl_b32 s69, s5, 3")
        k.e("s_lshl_b32 s72, s64, 1")
        k.e("s_add_u32 s69, s69, s72")
        k.e(f"s_mul_i32 s72, s69, {20*1024}")
        k.e(f"s_add_u32 s72, s72, {L.H_OFF}")
        k.e(f"v_add_u32 v{V_P0}, s72, v{V_L16}")
        k.e(f"v_add_u32 v{V_P1}, {20*1024}, v{V_P0}")
        k.e(f"v_mov_b32 v{V_B}, v{V_L16}")
        k.e(f"v_add_u32 v{V_B+1}, 65536, v{V_L16}")
        for i in range(4):
            k.e(f"v_mov_b32 v{V_ONES+i}, 0x3f803f80")
        k.e(f"v_mov_b32 v{V_ONE}, 1.0")
        k.e(f"v_mov_b32 v{V_ONE+1}, 1.0")
        k.e(f"v_lshrrev_b32 v{V_T}, 2, v2")
        k.e(f"v_lshlrev_b32 v{V_T}, 4, v{V_T}")
        k.e(f"v_add_u32 v{V_T}, v{V_T}, v2")
        k.e(f"v_lshlrev_b32 v{V_DIAG}, 2, v{V_T}")
        k.e(f"s_mul_i32 s77, s69, {48*1024}")
        k.e(f"s_mul_i32 s78, s6, {3*1024}")
        k.e("s_add_u32 s77, s77, s78")
        k.e(f"s_add_u32 s77, s77, {L.ACT_OFF}")
        k.e(f"v_add_u32 v{V_ST}, s77, v{V_L16}")
        k.e(f"s_mov_b32 s82, {48*1024}")
        k.e(f"v_add_u32 v{V_WR}, {WSX_LDS}, v{V_L16}")
        k.e(f"v_add_u32 v{V_WX}, s10, v{V_WR}")
        import math
        c0 = -2.0 * math.log2(math.e) * math.sqrt(2.0 / math.pi)
        c1 = c0 * 0.044715
        k.e(f"s_mov_b32 s83, {f32hex(c0)}")
        k.e(f"s_mov_b32 s84, {f32hex(c1)}")

    seam(k, "kf_s1", 0, between1)
    leak(k, "s1")
    k.stamp()

    def panel_ops(q):
        ops = []
        for jj in range(4):
            for b in range(2):
                def f(jj=jj, b=b):
                    if jj == 0 and b == 0:
                        k.e(f"s_mov_b32 s80, {q*4096}")
                    k.vmem(f"buffer_load_dwordx4 {a4(panel(b,4*q+jj))}, v{V_P0+b}, s[{S_WS}:{S_WS+3}], s80 offen offset:{jj*1024} sc1", ("panel", q))
                ops.append(f)
        return ops

    def dsread_ops(st):
        P, j = divmod(st, 20)
        ci = P * 5 + j // 4
        slot = slot3(ci)
        ops = []
        for n in range(4):
            off = (slot % 4) * CH + (n * 4 + j % 4) * 1024
            ops.append(lambda n=n, off=off: k.lds(f"ds_read_b128 {a4(sf(st&1, n))}, v{V_B + slot//4} offset:{off}", ("sf", st)))
        return ops

    def const_ops():
        ops = []
        E = lambda x: ops.append(lambda: k.e(x))
        for b in range(2):
            c = V_C + 4 * b
            E(f"v_sub_f32 v{c}, 0, v{V_MEAN[b]}")
            E(f"v_mul_f32 v{c+1}, s83, v{V_RINV[b]}")
            E(f"v_mul_f32 v{c+3}, v{V_RINV[b]}, v{V_RINV[b]}")
            E(f"v_mul_f32 v{c+2}, v{c+3}, v{V_RINV[b]}")
            E(f"v_mul_f32 v{c+2}, s84, v{c+2}")
        return ops

    def wx_write_ops():
        return [lambda n=n: k.lds(f"ds_write_b128 v{V_WX}, {v4(V_X + 4*n)} offset:{n*1024}", "wxw") for n in range(4)]

    def wx_read_ops():
        ops = []
        for u, dst in enumerate((W0, W1, W2, W3)):
            for n in range(4):
                ops.append(lambda u=u, n=n, dst=dst: k.lds(f"ds_read_b128 {v4(dst + 4*n)}, v{V_WR} offset:{u*4096 + n*1024}", "wxr"))
        return ops

    def wx_add_ops():
        ops = [lambda: k.wait_lg(lambda t: t == "wxr")]
        E = lambda x: ops.append(lambda: k.e(x))
        for i in range(16):
            E(f"v_add_f32 v{W0+i}, v{W0+i}, v{W1+i}")
            E(f"v_add_f32 v{W2+i}, v{W2+i}, v{W3+i}")
            E(f"v_add_f32 v{W0+i}, v{W0+i}, v{W2+i}")
        return ops

    def epi_ops(P, packed):
        ops = []
        E = lambda x: ops.append(lambda: k.e(x))
        for b in range(2):
            c = V_C + 4 * b
            Z = V_T + b * 12
            O = Z + 8
            G = [acc3(P, i // 4, b) + i % 4 for i in range(8)]
            U = [acc3(P, 2 + i // 4, b) + i % 4 for i in range(8)]
            WG = [W0 + i for i in range(8)]
            WU = [W0 + 8 + i for i in range(8)]
            if not packed:
                for i in range(8):
                    E(f"v_fma_f32 v{G[i]}, v{WG[i]}, v{c}, v{G[i]}")
                    E(f"v_fma_f32 v{U[i]}, v{WU[i]}, v{c}, v{U[i]}")
                for i in range(8):
                    E(f"v_mul_f32 v{Z+i}, v{G[i]}, v{G[i]}")
                    E(f"v_mul_f32 v{U[i]}, v{U[i]}, v{G[i]}")
                for i in range(8):
                    E(f"v_fma_f32 v{Z+i}, v{Z+i}, v{c+2}, v{c+1}")
                    E(f"v_mul_f32 v{U[i]}, v{U[i]}, v{c+3}")
                for i in range(8):
                    E(f"v_mul_f32 v{Z+i}, v{Z+i}, v{G[i]}")
                for i in range(8):
                    E(f"v_exp_f32 v{Z+i}, v{Z+i}")
                for i in range(8):
                    E(f"v_add_f32 v{Z+i}, 1.0, v{Z+i}")
                for i in range(8):
                    E(f"v_rcp_f32 v{Z+i}, v{Z+i}")
                for i in range(8):
                    E(f"v_mul_f32 v{U[i]}, v{U[i]}, v{Z+i}")
            else:
                for i in range(0, 8, 2):
                    E(f"v_pk_fma_f32 {v2(G[i])}, {v2(WG[i])}, {v2(c)}, {v2(G[i])} op_sel_hi:[1,0,1]")
                    E(f"v_pk_fma_f32 {v2(U[i])}, {v2(WU[i])}, {v2(c)}, {v2(U[i])} op_sel_hi:[1,0,1]")
                for i in range(0, 8, 2):
                    E(f"v_pk_mul_f32 {v2(Z+i)}, {v2(G[i])}, {v2(G[i])}")
                    E(f"v_pk_mul_f32 {v2(U[i])}, {v2(U[i])}, {v2(G[i])}")
                for i in range(0, 8, 2):
                    E(f"v_pk_fma_f32 {v2(Z+i)}, {v2(Z+i)}, {v2(c+2)}, {v2(c)} op_sel:[0,0,1] op_sel_hi:[1,0,1]")
                    E(f"v_pk_mul_f32 {v2(U[i])}, {v2(U[i])}, {v2(c+2)} op_sel:[0,1] op_sel_hi:[1,1]")
                for i in range(0, 8, 2):
                    E(f"v_pk_mul_f32 {v2(Z+i)}, {v2(Z+i)}, {v2(G[i])}")
                for i in range(8):
                    E(f"v_exp_f32 v{Z+i}, v{Z+i}")
                for i in range(0, 8, 2):
                    E(f"v_pk_add_f32 {v2(Z+i)}, {v2(Z+i)}, {v2(V_ONE)}")
                for i in range(8):
                    E(f"v_rcp_f32 v{Z+i}, v{Z+i}")
                for i in range(0, 8, 2):
                    E(f"v_pk_mul_f32 {v2(U[i])}, {v2(U[i])}, {v2(Z+i)}")
            for p in range(4):
                E(f"v_cvt_pk_bf16_f32 v{O+p}, v{U[2*p]}, v{U[2*p+1]}")
            sof = "0" if b == 0 else "s82"
            ops.append(lambda O=O, sof=sof: k.vmem(f"buffer_store_dwordx4 {v4(O)}, v{V_ST}, s[{S_WS}:{S_WS+3}], {sof} offen offset:{P*1024} sc1", ("st",)))
        return ops

    wd_slots = [208 + 4 * i for i in range(12)] + [160 + 4 * i for i in range(4)]
    for j in range(20):
        wd_slots += [panel(0, j), panel(1, j)]
    wd_slots += [176 + 4 * i for i in range(4)]
    assert len(wd_slots) == 60

    def wd(ks, blk):
        return wd_slots[ks * 5 + blk]

    def wd_op(idx):
        ks, blk = divmod(idx, 5)
        def f():
            k.e(f"s_add_u32 s12, s13, {(blk*48 + ks)*1024}")
            k.vmem(f"buffer_load_dwordx4 {a4(wd_slots[idx])}, v{V_L16}, s[{S_WS}:{S_WS+3}], s12 offen", ("wd",))
        return f

    for q in range(2):
        for op in panel_ops(q):
            op()
    k.wait_vm(lambda t: t == ("panel", 0))
    for op in dsread_ops(0):
        op()
    for P in range(3):
        per = [[] for _ in range(20)]

        def dist(ops, j0, j1):
            for i, op in enumerate(ops):
                per[j0 + i * (j1 - j0 + 1) // len(ops)].append(op)

        if P == 1:
            dist(stats_ops(k, ASUM, ASQ, V_T, V_MEAN, V_RINV, V_DIAG) + const_ops(), 1, 4)
        if P >= 1:
            dist(wx_read_ops(), 4, 5)
            dist(wx_add_ops() + epi_ops(P - 1, False), 6, 18)
        if P == 2:
            dist([wd_op(i) for i in range(16)], 0, 3)
        pend_vm = []
        if P == 0:
            pend_vm = panel_ops(2) + panel_ops(3) + panel_ops(4)
        for j in range(20):
            st = P * 20 + j
            ci = P * 5 + j // 4
            k.wait_lg(lambda t: t == ("sf", st))
            side = []
            if j % 4 == 3 and st + 1 < 60:
                k.wait_vm(lambda t: t == ("dma", ci + 1) or t == ("panel", ci + 1))
                if P >= 1 and j == 3:
                    k.wait_lg(lambda t: t == "wxw")
                k.e("s_barrier")
                if ci + 8 < 15:
                    pend_vm += dma_ops(ci + 8, V_L16)
            if st + 1 < 60:
                side += dsread_ops(st + 1)
            ntake = min(len(pend_vm), 8) if P == 0 else ((len(pend_vm) + 2) // 3 if j % 4 != 2 else len(pend_vm))
            side += pend_vm[:ntake]
            pend_vm = pend_vm[ntake:]
            side += per[j]
            if P == 2 and j >= 1:
                side += [wd_op(16 + 2 * (j - 1)), wd_op(17 + 2 * (j - 1))]
            main = []
            M = lambda x: main.append(lambda: k.e(x))
            for n in range(4):
                for b in range(2):
                    cin = "0" if j == 0 else v4(acc3(P, n, b))
                    M(f"v_mfma_f32_16x16x32_bf16 {v4(acc3(P,n,b))}, {a4(sf(st&1,n))}, {a4(panel(b,j))}, {cin}")
            if P == 0:
                for b in range(2):
                    M(f"v_mfma_f32_16x16x32_bf16 {a4(ASUM[b])}, {v4(V_ONES)}, {a4(panel(b,j))}, {'0' if j == 0 else a4(ASUM[b])}")
                    M(f"v_mfma_f32_16x16x32_bf16 {a4(ASQ[b])}, {a4(panel(b,j))}, {a4(panel(b,j))}, {'0' if j == 0 else a4(ASQ[b])}")
            spread(k, main, side)
            if j % 3 == 0:
                k.stamp(tag=f"p{P}")
            if P >= 1 and j == 0:
                for op in wx_write_ops():
                    op()
            lab = f"kf_ws_{st}"
            k.e(f"s_cmp_lg_u32 s64, {j % 4}")
            k.e(f"s_cbranch_scc1 {lab}")
            for n in range(4):
                k.e(f"v_mfma_f32_16x16x32_bf16 {v4(V_X+4*n)}, {a4(sf(st&1,n))}, {v4(V_ONES)}, {'0' if j < 4 else v4(V_X+4*n)}")
            k.label(lab)
        assert not pend_vm
        k.stamp()
    for i in range(54, 60):
        wd_op(i)()
    k.e("s_nop 7")
    k.e("s_nop 7")
    for op in wx_write_ops():
        op()
    k.wait_lg_all()
    k.e("s_barrier")
    for op in wx_read_ops() + wx_add_ops() + epi_ops(2, True):
        op()
    k.stamp()

    V_B4 = 8
    V_R4 = 12
    V_LW4, V_LR04, V_LR14 = 13, 14, 15
    ACC4 = 16
    STG4 = 96
    NST4 = 4

    def acc4(blk, tb):
        return ACC4 + (blk * 4 + tb) * 4

    def fb4(s, hh, tb):
        return STG4 + (s % NST4) * 32 + (hh * 4 + tb) * 4

    def between2():
        k.e(f"s_mul_i32 s72, s64, {12*1024}")
        k.e(f"s_mul_i32 s74, s65, {4*48*1024}")
        k.e("s_add_u32 s74, s74, s72")
        k.e(f"s_add_u32 s74, s74, {L.ACT_OFF}")
        k.e(f"v_add_u32 v{V_B4}, s74, v{V_L16}")
        for tb in range(1, 4):
            k.e(f"v_add_u32 v{V_B4+tb}, {tb*48*1024}, v{V_B4}")
        k.e("s_lshl_b32 s75, s65, 6")
        k.e("s_lshl_b32 s76, s64, 4")
        k.e("s_add_u32 s75, s75, s76")
        k.e(f"v_add_u32 v{V_T}, s75, v2")
        k.e(f"v_mul_u32_u24 v{V_T}, 1280, v{V_T}")
        k.e(f"v_lshlrev_b32 v{V_T+1}, 3, v3")
        k.e(f"v_add_u32 v{V_T}, v{V_T}, v{V_T+1}")
        k.e("s_mul_i32 s75, s66, 160")
        k.e(f"v_add_u32 v{V_R4}, s75, v{V_T}")
        k.e("s_mul_i32 s75, s64, 20480")
        k.e(f"v_add_u32 v{V_LW4}, s75, v{V_L16}")
        k.e("s_mul_i32 s75, s64, 5120")
        k.e(f"v_add_u32 v{V_LR04}, s75, v{V_L16}")
        k.e(f"v_add_u32 v{V_LR14}, 40960, v{V_LR04}")

    leak(k, "p3e")
    seam(k, "kf_s2", 1, between2)
    leak(k, "s2")
    k.stamp()

    def ld_ops(s):
        ops = []
        for hh in range(2):
            for tb in range(4):
                def f(hh=hh, tb=tb):
                    if hh == 0 and tb == 0:
                        k.e(f"s_mov_b32 s80, {s*2048}")
                    k.vmem(f"buffer_load_dwordx4 {v4(fb4(s,hh,tb))}, v{V_B4+tb}, s[{S_WS}:{S_WS+3}], s80 offen offset:{hh*1024} sc1", ("ld", s, hh))
                ops.append(f)
        return ops

    NS4 = 6
    for s in range(NST4 - 1):
        for op in ld_ops(s):
            op()
    for s in range(NS4):
        ex = ld_ops(s + NST4 - 1) if s + NST4 - 1 < NS4 else []
        for hh in range(2):
            k.wait_vm(lambda t: t == ("ld", s, hh))
            main = []
            for blk in range(5):
                for tb in range(4):
                    cin = "0" if (s == 0 and hh == 0) else v4(acc4(blk, tb))
                    main.append(lambda hh=hh, blk=blk, tb=tb, cin=cin: k.e(f"v_mfma_f32_16x16x32_bf16 {v4(acc4(blk,tb))}, {a4(wd(2*s+hh,blk))}, {v4(fb4(s,hh,tb))}, {cin}"))
            interleave(k, main, ex[hh * 4:(hh + 1) * 4], every=2)
    k.e("s_nop 7")
    k.e("s_nop 7")
    k.stamp()
    OB4 = 200
    t2_reduce(k, False, lambda blk, tb: v4(acc4(blk, tb)), V_LW4, V_LR04, V_LR14, STG4, V_HK, OB4)
    for blk in range(5):
        k.vmem(f"buffer_store_dwordx2 {v2(OB4+2*blk)}, v{V_R4}, s[{S_O}:{S_O+3}], 0 offen offset:{blk*32}", ("st",))
    if LEAK:
        k.e("s_waitcnt vmcnt(0)")
        leak(k, "end")
        k.e("s_cmp_lg_u32 s4, 0")
        k.e("s_cbranch_scc1 kf_nolk")
        k.e("s_cmp_lg_u32 s64, 0")
        k.e("s_cbranch_scc1 kf_nolk")
        k.e("v_mov_b32 v5, 0")
        k.e(f"s_mov_b32 s70, {TS_OFF + 2048}")
        k.e(f"buffer_load_dword v6, v5, s[{S_WS}:{S_WS+3}], s70 offen")
        k.e(f"s_mov_b32 s70, {TS_OFF}")
        k.e("v_lshlrev_b32 v5, 4, v1")
        k.e(f"buffer_load_dwordx4 v[8:11], v5, s[{S_WS}:{S_WS+3}], s70 offen")
        k.e("s_waitcnt vmcnt(0)")
        k.e("v_readfirstlane_b32 s71, v6")
        if LEAK == "k1e":
            for i in range(4):
                k.e(f"v_subrev_u32 v{8+i}, s71, v{8+i}")
            k.e("v_max_u32 v8, v8, v9")
            k.e("v_max_u32 v10, v10, v11")
            k.e("v_max_u32 v8, v8, v10")
            k.e("s_mov_b32 s72, 0")
            for l in range(64):
                k.e(f"v_readlane_b32 s73, v8, {l}")
                k.e("s_max_u32 s72, s72, s73")
        elif LEAK == "zero":
            k.e("s_mov_b32 s72, 0")
        else:
            k.e("s_sub_u32 s72, s100, s71")
        k.e("s_min_u32 s72, s72, 20000")
        k.e("s_add_u32 s72, s72, 10000")
        k.label("kf_lkspin")
        k.e("s_memrealtime s[100:101]")
        k.e("s_waitcnt lgkmcnt(0)")
        k.e("s_sub_u32 s73, s100, s71")
        k.e("s_cmp_lt_u32 s73, s72")
        k.e("s_cbranch_scc1 kf_lkspin")
        k.label("kf_nolk")
    k.stamp_flush()
    k.label(f"{k.name}_end")
    k.e("s_endpgm")
    return k, dict(vgpr=256, agpr=256, lds=TK_LDS + 256, grid=256, block=256)


def main():
    ks = [gen_k1(), gen_f()]
    out = []
    hdr = open(f"cdna_kernels/{NAME}.s.ref").read().splitlines()
    for line in hdr:
        if line.startswith(";") and "@launch" not in line:
            out.append(line)
    for k, m in ks:
        out.append(f"; @launch kernel={k.name} grid=({m['grid']},1,1) block=({m['block']},1,1) lds={m['lds']}")
    out.append('.amdgcn_target "amdgcn-amd-amdhsa--gfx950"')
    out.append(".text")
    for k, m in ks:
        out.append(f".globl {k.name}")
        out.append(".p2align 8")
        out.append(f".type {k.name},@function")
        out.append(f"{k.name}:")
        out.append(k.text())
    out.append('.section .rodata,"a"')
    for k, m in ks:
        out.append(".p2align 6")
        out.append(f".amdhsa_kernel {k.name}")
        out.append(f"  .amdhsa_next_free_vgpr {m['vgpr'] + m['agpr']}")
        out.append("  .amdhsa_next_free_sgpr 102")
        out.append(f"  .amdhsa_accum_offset {m['vgpr']}")
        out.append("  .amdhsa_group_segment_fixed_size 0")
        out.append("  .amdhsa_kernarg_size 96")
        out.append("  .amdhsa_user_sgpr_count 2")
        out.append("  .amdhsa_user_sgpr_kernarg_segment_ptr 1")
        out.append("  .amdhsa_system_sgpr_workgroup_id_x 1")
        out.append(".end_amdhsa_kernel")
    path = sys.argv[1] if len(sys.argv) > 1 else f"cdna_kernels/{NAME}.s"
    open(path, "w").write("\n".join(out) + "\n")
    print("wrote", path, sum(len(k.L) for k, _ in ks), "lines")


main()
```
